```python
import torch

def _softmax(x, axis=-1):
    return torch.softmax(x, dim=axis)
def _gelu(x):
    return torch.nn.functional.gelu(x, approximate="tanh")
def _silu(x):
    return torch.nn.functional.silu(x)
def _sigmoid(x):
    return torch.sigmoid(x)
def _layernorm(x, axis=-1, eps=1e-5):
    m = x.mean(dim=axis, keepdim=True)
    v = x.var(dim=axis, keepdim=True, unbiased=False)
    return (x - m) / torch.sqrt(v + eps)
def _scatter_add(tgt, idx, src, axis=0):
    return tgt.clone().index_add_(axis, idx, src)
def _segment_sum(src, seg, n):
    out = torch.zeros((n,) + src.shape[1:], dtype=src.dtype)
    return out.index_add_(0, seg, src)
def _pad(x, pw):
    flat = tuple(v for pair in reversed(pw) for v in pair)
    return torch.nn.functional.pad(x, flat)

kernel_name = 'concat_heads__spectral_gfnet__grouped_kv_mqa__prompt'

def setup_inputs():

    _w = (lambda a: (lambda t: t.to(torch.bfloat16) if t.is_floating_point() else t)(torch.as_tensor(a)))
    def _A_setup():
        B, S, D = 1, 2048, 576
        Df = D // 2 + 1
        return {
            "x": _w((lambda *s: torch.randn(*s, dtype=torch.bfloat16) * 0.05)(B, S, D)),
            "w_r": _w((lambda *s: torch.randn(*s, dtype=torch.bfloat16) * 0.8)(S, Df) * 0.02),
            "w_i": _w((lambda *s: torch.randn(*s, dtype=torch.bfloat16) * 0.8)(S, Df) * 0.02),
        }
    _A_in = _A_setup()

    def _B_setup():
        B, S, D, H = 1, 2048, 576, 32
        Dh = D // H
        return {
            "x": _w((lambda *s: torch.randn(*s, dtype=torch.bfloat16) * 0.05)(B, S, D)),
            "wq": _w((lambda *s: torch.randn(*s, dtype=torch.bfloat16) * 0.8)(D, H * Dh)),
            "wk": _w((lambda *s: torch.randn(*s, dtype=torch.bfloat16) * 0.8)(D, Dh)),
            "wv": _w((lambda *s: torch.randn(*s, dtype=torch.bfloat16) * 0.05)(D, Dh)),
            "wo": _w((lambda *s: torch.randn(*s, dtype=torch.bfloat16) * 0.05)(H * Dh, D)),
        }
    _B_in = _B_setup()

    return {
        "A_x": _A_in["x"],
        "A_w_r": _A_in["w_r"],
        "A_w_i": _A_in["w_i"],
        "B_x": _B_in["x"],
        "B_wq": _B_in["wq"],
        "B_wk": _B_in["wk"],
        "B_wv": _B_in["wv"],
        "B_wo": _B_in["wo"],
    }

def reference(A_x, A_w_r, A_w_i, B_x, B_wq, B_wk, B_wv, B_wo):
    def _A_ref(x, w_r, w_i):
        B, S, D = x.shape
        X = (lambda x, axes=(-2,-1): torch.fft.rfft2(x.float(), dim=axes))(x, axes=(-2, -1))
        W = w_r + 1j * w_i
        X = X * W
        y = (lambda x, s, axes=(-2,-1): torch.fft.irfft2(x, s=s, dim=axes).to(torch.bfloat16))(X, (S, D), axes=(-2, -1))
        return y

    def _B_ref(x, wq, wk, wv, wo):
        B, S, D = x.shape
        H = 32
        Dh = D // H
        q = (lambda x, *d: x.permute(*d))((x @ wq).reshape(B, S, H, Dh), 0, 2, 1, 3)
        k = x @ wk
        v = x @ wv
        scores = torch.einsum("bhqd,bkd->bhqk", q, k) * (Dh ** -0.5)
        p = _softmax(scores, axis=-1)
        o = torch.einsum("bhqk,bkd->bhqd", p, v)
        return (lambda x, *d: x.permute(*d))(o, 0, 2, 1, 3).reshape(B, S, H * Dh) @ wo

    a = _A_ref(A_x, A_w_r, A_w_i)
    b = _B_ref(B_x, B_wq, B_wk, B_wv, B_wo)
    return torch.concatenate([a, b], axis=-1)
```

```python
import numpy as np, math
NAME="concat_heads__spectral_gfnet__grouped_kv_mqa__prompt"
QS   = 0x000000
KVI  = 0x240000
KMAX = 0x270000
OB   = 0x280000
X1T  = 0x4C0000
WT   = 0x710000
ZT   = 0x960000
WS_USED = 0xC00000
CHUNK = 37888
SCALE_Q = math.log2(math.e)/math.sqrt(18.0)

class Asm:
    def __init__(s): s.l=[]; s.n=0
    def __call__(s, *lines):
        for x in lines:
            for y in x.split('\n'):
                y=y.strip()
                if y: s.l.append(y if y.endswith(':') else '  '+y)
    def lab(s, p):
        s.n+=1; return f"L_{p}_{s.n}"
    def text(s): return '\n'.join(s.l)+'\n'

def vr(a,n=1): return f"v{a}" if n==1 else f"v[{a}:{a+n-1}]"
def sr(a,n=1): return f"s{a}" if n==1 else f"s[{a}:{a+n-1}]"
def ar(a,n=1): return f"a{a}" if n==1 else f"a[{a}:{a+n-1}]"

def f2bits(x): return int(np.float32(x).view(np.uint32))
def bf16_bits(a):
    a=np.asarray(a,dtype=np.float32); u=a.view(np.uint32).astype(np.uint64)
    r=(u+0x7FFF+((u>>16)&1))>>16
    return r.astype(np.uint16)
def bf16_to_f32(u): return (np.asarray(u,dtype=np.uint16).astype(np.uint32)<<16).view(np.float32)

def srd(a, s, base, nbytes):
    a(f"s_mov_b32 s{s}, s{base}", f"s_and_b32 s{s+1}, s{base+1}, 0xffff", f"s_mov_b32 s{s+2}, {hex(nbytes)}", f"s_mov_b32 s{s+3}, 0x20000")

def srd_off(a, s, base, off, nbytes):
    a(f"s_add_u32 s{s}, s{base}, {hex(off)}", f"s_addc_u32 s{s+1}, s{base+1}, 0", f"s_and_b32 s{s+1}, s{s+1}, 0xffff",
      f"s_mov_b32 s{s+2}, {hex(nbytes)}", f"s_mov_b32 s{s+3}, 0x20000")

def table_srd(a, s, label, nbytes):
    l=a.lab("pc")
    a(f"s_getpc_b64 s[{s}:{s+1}]", f"{l}:", f"s_add_u32 s{s}, s{s}, {label}-{l}", f"s_addc_u32 s{s+1}, s{s+1}, 0",
      f"s_and_b32 s{s+1}, s{s+1}, 0xffff", f"s_mov_b32 s{s+2}, {hex(nbytes)}", f"s_mov_b32 s{s+3}, 0x20000")

def sig(h,j): return 8*(j//4)+4*h+(j%4)

def frag_from(fn, perm):
    out=np.zeros((64,8),dtype=np.float32)
    for l in range(64):
        h,m=l//32,l%32
        for j in range(8):
            k = sig(h,j) if perm else 8*h+j
            out[l,j]=fn(m,k)
    return bf16_bits(out)

def emit_data(a, label, arr_u32):
    a.l.append(f".p2align 8"); a.l.append(f".type {label},@object"); a.l.append(f"{label}:")
    arr=np.asarray(arr_u32,dtype=np.uint32).ravel()
    assert len(arr)%2==0
    q=arr[0::2].astype(np.uint64)|(arr[1::2].astype(np.uint64)<<np.uint64(32))
    for i in range(0,len(q),16):
        a.l.append(".quad "+",".join(hex(int(x)) for x in q[i:i+16]))
    a.l.append(f".size {label}, {len(arr)*4}")

def kernel_desc(a, name, vgpr, sgpr=102, accum=None):
    accum = accum if accum else ((vgpr+3)//4*4)
    a.l.append('.section .rodata,"a"'); a.l.append('.p2align 6'); a.l.append(f'.amdhsa_kernel {name}')
    for x in [f'.amdhsa_next_free_vgpr {vgpr}', f'.amdhsa_next_free_sgpr {sgpr}', f'.amdhsa_accum_offset {accum}',
              '.amdhsa_group_segment_fixed_size 0','.amdhsa_kernarg_size 88','.amdhsa_user_sgpr_count 2',
              '.amdhsa_user_sgpr_kernarg_segment_ptr 1','.amdhsa_system_sgpr_workgroup_id_x 1',
              '.amdhsa_float_denorm_mode_32 3']:
        a.l.append('  '+x)
    a.l.append('.end_amdhsa_kernel'); a.l.append('.text')

def kernel_head(a, name):
    a.l += ['.text', f'.globl {name}', '.p2align 8', f'.type {name},@function', f'{name}:']
```

```python
from common import *
STG=24576; NST=6
def wave_lane(a, sW):
    a("v_lshrrev_b32 v1, 6, v0", "v_and_b32 v0, 63, v0", "s_nop 0", f"v_readfirstlane_b32 s{sW}, v1")

def x_dma_setup(a, sW, vX, RS):
    a(f"v_lshrrev_b32 v1, 3, v0", f"v_and_b32 v2, 7, v0", "v_xor_b32 v2, v2, v1", "v_lshlrev_b32 v2, 4, v2")
    a(f"s_lshl_b32 s20, s{sW}, 5", "v_add_u32 v1, s20, v1", f"s_mov_b32 s20, {RS}", f"v_mul_lo_u32 v1, v1, s20", f"v_add_u32 v{vX}, v1, v2")

def x_dma(a, srdX, vX, sOff, sLds, RS, kc, stage, stgsz):
    for i in range(4):
        a(f"s_add_u32 s21, s{sLds}, {stage*stgsz+i*1024}", "s_mov_b32 m0, s21", f"s_add_u32 s22, s{sOff}, {kc*128+i*8*RS}")
        a(f"buffer_load_dwordx4 v{vX}, {sr(srdX,4)}, s22 offen lds")

def x_frag_addr(a, sW, regs):
    a("v_and_b32 v1, 31, v0", "v_lshrrev_b32 v2, 5, v0", "v_and_b32 v3, 7, v1")
    a(f"s_lshl_b32 s20, s{sW}, 12", "v_lshlrev_b32 v1, 7, v1", "v_add_u32 v1, s20, v1")
    for ks in range(4):
        a(f"v_add_u32 v4, {2*ks}, v2", "v_xor_b32 v4, v4, v3", f"v_lshl_add_u32 v{regs[ks]}, v4, 4, v1")

def store_tile_bf16(a, acc, srdO, vO, sO, scale, tmp):
    if scale is not None:
        a(f"s_mov_b32 s20, {hex(f2bits(scale))}")
        for r in range(32): a(f"v_mul_f32 v{acc+r}, s20, v{acc+r}")
    for nt in range(2):
        for gp in range(2):
            b=tmp+(nt*2+gp)*4; r=acc+nt*16+gp*8
            for i in range(4): a(f"v_cvt_pk_bf16_f32 v{b+i}, v{r+2*i}, v{r+2*i+1}")
            a("s_nop 1", f"v_permlane32_swap_b32 v{b}, v{b+2}", f"v_permlane32_swap_b32 v{b+1}, v{b+3}")
            a(f"buffer_store_dwordx4 {vr(b,4)}, v{vO}, {sr(srdO,4)}, s{sO} offen offset:{nt*64+gp*32}")

def emit_gemm(a, sW, sId, srdX, xoff, srdW, srdO, ooff, oRS, scale):
    RS=1152
    vX,vWd=5,6; xa=[8,9,10,11]; wa=[12,13]; vO=14
    XF=[16,20]; WF=[24,32]; ACC=48; TMP=80
    sRow,sCol,sXo,sWo,sL,sL2=24,25,26,27,28,29
    a(f"s_and_b32 s20, s{sId}, 7", f"s_lshr_b32 s21, s{sId}, 3", "s_and_b32 s22, s21, 1", "s_lshl_b32 s20, s20, 1", f"s_add_u32 s{sRow}, s20, s22", f"s_lshr_b32 s{sCol}, s{sId}, 4")
    a(f"s_mul_i32 s{sXo}, s{sRow}, {128*RS}", f"s_add_u32 s{sXo}, s{sXo}, {hex(xoff)}" , f"s_lshl_b32 s{sWo}, s{sCol}, 7")
    a(f"s_lshl_b32 s{sL}, s{sW}, 12", f"s_lshl_b32 s{sL2}, s{sW}, 11")
    x_dma_setup(a,sW,vX,RS)
    a("v_lshrrev_b32 v1, 3, v0", "v_and_b32 v2, 7, v0", "v_lshrrev_b32 v3, 1, v1", "v_and_b32 v3, 1, v3", "v_lshlrev_b32 v3, 2, v3", "v_xor_b32 v2, v2, v3", "v_lshlrev_b32 v2, 4, v2")
    a(f"s_lshl_b32 s20, s{sW}, 4", "v_add_u32 v1, s20, v1", f"s_mov_b32 s20, {RS}", "v_mul_lo_u32 v1, v1, s20", f"v_add_u32 v{vWd}, v1, v2")
    def dma(kc):
        st=kc%NST
        x_dma(a,srdX,vX,sXo,sL,RS,kc,st,STG)
        for i in range(2):
            a(f"s_add_u32 s21, s{sL2}, {st*STG+16384+i*1024}", "s_mov_b32 m0, s21", f"s_add_u32 s22, s{sWo}, {(kc*64+i*8)*RS}")
            a(f"buffer_load_dwordx4 v{vWd}, {sr(srdW,4)}, s22 offen lds")
    for kc in range(NST): dma(kc)
    x_frag_addr(a,sW,xa)
    a("v_and_b32 v1, 15, v0", "v_lshrrev_b32 v2, 2, v1", "v_and_b32 v1, 3, v1", "v_lshrrev_b32 v3, 4, v0", "v_lshrrev_b32 v4, 1, v3", "v_and_b32 v3, 1, v3")
    a("v_lshl_add_u32 v4, v4, 3, v2", "v_lshlrev_b32 v4, 7, v4")
    a("v_lshrrev_b32 v7, 1, v1", "v_lshl_add_u32 v7, v3, 1, v7", "v_and_b32 v1, 1, v1", "v_lshlrev_b32 v1, 3, v1", "v_lshrrev_b32 v2, 1, v2", "v_lshlrev_b32 v2, 2, v2")
    a("v_add_u32 v4, v4, v1", "v_add_u32 v4, 16384, v4")
    a("v_xor_b32 v3, v7, v2", f"v_lshl_add_u32 v{wa[0]}, v3, 4, v4", "v_xor_b32 v7, 4, v7", "v_xor_b32 v3, v7, v2", f"v_lshl_add_u32 v{wa[1]}, v3, 4, v4")
    a("v_and_b32 v1, 31, v0", "v_lshrrev_b32 v2, 5, v0", f"s_lshl_b32 s20, s{sW}, 5", "v_add_u32 v1, s20, v1", f"s_mov_b32 s20, {oRS}", "v_mul_lo_u32 v1, v1, s20", f"v_lshl_add_u32 v{vO}, v2, 4, v1")
    for r in range(32): a(f"v_mov_b32 v{ACC+r}, 0")
    def rd(buf,so,ks):
        a(f"ds_read_b128 {vr(XF[buf],4)}, v{xa[ks]} offset:{so}")
        for nt in range(2):
            for b in range(2):
                a(f"ds_read_b64_tr_b16 {vr(WF[buf]+4*nt+2*b,2)}, v{wa[nt]} offset:{so+(16*ks+4*b)*128}")
    vm={0:30,1:24,2:24,3:24,4:24,5:18,6:12,7:6,8:0}
    for kc in range(9):
        st=kc%NST; so=(st%2)*STG
        if kc>0 and st%2==0:
            d = 2*STG if st!=0 else -4*STG
            for r in xa+wa: a(f"v_add_u32 v{r}, {d if d>0 else hex(d & 0xffffffff)}, v{r}")
        a(f"s_waitcnt vmcnt({vm[kc]})", "s_barrier")
        if 1<=kc<=3: dma(kc+5)
        rd(0,so,0)
        for ks in range(4):
            b=ks%2
            if ks<3:
                rd(1-b,so,ks+1); a("s_waitcnt lgkmcnt(5)")
            else: a("s_waitcnt lgkmcnt(0)")
            for nt in range(2):
                a(f"v_mfma_f32_32x32x16_bf16 {vr(ACC+16*nt,16)}, {vr(WF[b]+4*nt,4)}, {vr(XF[b],4)}, {vr(ACC+16*nt,16)}")
    a("s_nop 7","s_nop 7")
    a(f"s_mul_i32 s23, s{sRow}, {128*oRS}", f"s_add_u32 s23, s23, s{sWo}", f"s_add_u32 s23, s23, {hex(ooff)}")
    store_tile_bf16(a,ACC,srdO,vO,23,scale,TMP)

def pipe(a,n,rd,use,D,extra=0):
    for i in range(min(D,n)): rd(i,i%(D+1))
    for i in range(n):
        if i+D<n: rd(i+D,(i+D)%(D+1))
        a(f"s_waitcnt lgkmcnt({min(D,n-1-i)})")
        use(i,i%(D+1))
```

```python
from common import *
from tables import *
from gemm import *
GRID=256; LDS=147456
def emit_kv(a,sW,sId,srdX,srdK,srdV,srdWS):
    RS=1152; XS=16384; WB=6*XS
    vX=5; xa=[8,9,10,11]; vWa=12; XF=[16,20]; KF=[24,28]; VF=[32,36]; AK=48; AV=64; ST=96
    sXo,sL=26,28
    a(f"s_mul_i32 s{sXo}, s{sId}, {128*RS}", f"s_lshl_b32 s{sL}, s{sW}, 12")
    x_dma_setup(a,sW,vX,RS)
    for kc in range(6): x_dma(a,srdX,vX,sXo,sL,RS,kc,kc,XS)
    a(f"s_lshl_b32 s20, s{sW}, 6", "v_add_u32 v1, s20, v0", "v_mul_u32_u24 v2, 7282, v1", "v_lshrrev_b32 v2, 16, v2", "v_mul_u32_u24 v3, 9, v2", "v_sub_u32 v3, v1, v3")
    a("v_mul_u32_u24 v6, 36, v2", "v_lshl_add_u32 v6, v3, 2, v6", "v_mul_u32_u24 v7, 80, v2", "v_lshl_add_u32 v7, v3, 2, v7", f"v_add_u32 v7, {WB}, v7")
    for arr,s_ in enumerate((srdK,srdV)):
        for r in range(21):
            a(f"s_mov_b32 s20, {r*1008}", f"buffer_load_dword v{ST+arr*21+r}, v6, {sr(s_,4)}, s20 offen")
    x_frag_addr(a,sW,xa)
    a("v_and_b32 v1, 15, v0", "v_lshrrev_b32 v2, 2, v1", "v_and_b32 v1, 3, v1", "v_lshrrev_b32 v3, 4, v0", "v_lshrrev_b32 v4, 1, v3", "v_and_b32 v3, 1, v3")
    a("v_lshl_add_u32 v4, v4, 3, v2", "v_mul_u32_u24 v4, 80, v4", "v_lshl_add_u32 v4, v3, 5, v4", "v_lshl_add_u32 v4, v1, 3, v4", f"v_add_u32 v{vWa}, {WB}, v4")
    for r in range(32): a(f"v_mov_b32 v{AK+r}, 0")
    a("s_waitcnt vmcnt(0)")
    for arr in range(2):
        for r in range(21): a(f"ds_write_b32 v7, v{ST+arr*21+r} offset:{r*2240+arr*40}")
    def rd(buf,so,ks,kk):
        a(f"ds_read_b128 {vr(XF[buf],4)}, v{xa[ks]} offset:{so}")
        for b in range(2):
            a(f"ds_read_b64_tr_b16 {vr(KF[buf]+2*b,2)}, v{vWa} offset:{(16*kk+4*b)*80}")
            a(f"ds_read_b64_tr_b16 {vr(VF[buf]+2*b,2)}, v{vWa} offset:{(16*kk+4*b)*80+40}")
    vm={0:None,1:None,6:8,7:4,8:0}
    for kc in range(9):
        st=kc%6; so=(st%4)*XS
        if kc>0 and st%4==0:
            d = 4*XS if st!=0 else -4*XS
            for r in xa: a(f"v_add_u32 v{r}, {d if d>0 else hex(d & 0xffffffff)}, v{r}")
        if kc in (6,7,8): a(f"s_waitcnt vmcnt({vm[kc]})")
        a("s_waitcnt lgkmcnt(0)", "s_barrier")
        if 1<=kc<=3: x_dma(a,srdX,vX,sXo,sL,RS,kc+5,(kc+5)%6,XS)
        rd(0,so,0,4*kc)
        for ks in range(4):
            b=ks%2
            if ks<3:
                rd(1-b,so,ks+1,4*kc+ks+1); a("s_waitcnt lgkmcnt(5)")
            else: a("s_waitcnt lgkmcnt(0)")
            a(f"v_mfma_f32_32x32x16_bf16 {vr(AK,16)}, {vr(KF[b],4)}, {vr(XF[b],4)}, {vr(AK,16)}")
            a(f"v_mfma_f32_32x32x16_bf16 {vr(AV,16)}, {vr(XF[b],4)}, {vr(VF[b],4)}, {vr(AV,16)}")
    a("s_nop 7","s_nop 7")
    a(f"s_lshl_b32 s20, s{sId}, 2", f"s_add_u32 s20, s20, s{sW}", "s_lshr_b32 s21, s20, 4", "s_and_b32 s22, s20, 15", f"s_mul_i32 s21, s21, {CHUNK}", f"s_add_u32 s21, s21, {hex(KVI)}")
    ws=sr(srdWS,4)
    a("v_and_b32 v1, 31, v0", "v_lshrrev_b32 v2, 5, v0")
    for i in range(4): a(f"v_cvt_pk_bf16_f32 v{ST+i}, v{AK+2*i}, v{AK+2*i+1}")
    a(f"v_cvt_pk_bf16_f32 v{ST+4}, v{AK+8}, v{AK+9}")
    a("v_lshlrev_b32 v3, 4, v0", "s_lshl_b32 s23, s22, 10", "s_add_u32 s23, s23, s21")
    a(f"buffer_store_dwordx4 {vr(ST,4)}, v3, {ws}, s23 offen")
    a("v_lshlrev_b32 v3, 2, v1", "v_cmp_gt_u32 vcc, 32, v0", "v_mov_b32 v4, 0x7ff00000", "s_nop 0", "v_cndmask_b32 v3, v4, v3, vcc")
    a("s_lshl_b32 s23, s22, 7", "s_add_u32 s23, s23, s21", "s_add_u32 s23, s23, 16384", f"buffer_store_dword v{ST+4}, v3, {ws}, s23 offen")
    a(f"v_cndmask_b32 v6, 0, v{AK+8}, vcc", f"v_cndmask_b32 v7, 0, v{AK+9}, vcc", "v_max_f32 v6, |v6|, |v7|")
    for i in range(4): a(f"v_max3_f32 v6, |v{AK+2*i}|, |v{AK+2*i+1}|, v6")
    a("v_mov_b32 v7, 0")
    for i in range(8): a(f"v_max3_f32 v7, |v{AV+2*i}|, |v{AV+2*i+1}|, v7")
    a("v_cmp_gt_u32 vcc, 18, v1", "s_nop 1", "v_cndmask_b32 v7, 0, v7, vcc", "v_max_f32 v6, v6, v7")
    a("v_cmp_eq_u32 s[24:25], 18, v1", "v_mov_b32 v8, 0x3f803f80")
    a("v_mul_u32_u24 v3, 19, v2", "v_add_u32 v3, v3, v1", "v_lshlrev_b32 v3, 4, v3", "v_cmp_gt_u32 vcc, 19, v1", "s_nop 1", "v_cndmask_b32 v3, v4, v3, vcc")
    a("s_mul_i32 s23, s22, 1216", "s_add_u32 s23, s23, s21", "s_add_u32 s23, s23, 18432")
    for u in range(2):
        b=ST+8+4*u
        for i in range(4):
            a(f"v_cvt_pk_bf16_f32 v{b+i}, v{AV+8*u+2*i}, v{AV+8*u+2*i+1}", f"v_cndmask_b32 v{b+i}, v{b+i}, v8, s[24:25]")
        a(f"buffer_store_dwordx4 {vr(b,4)}, v3, {ws}, s23 offen offset:{608*u}")
    for sh in (1,2,4,8): a("s_nop 1", f"v_max_f32_dpp v6, v6, v6 row_shr:{sh} row_mask:0xf bank_mask:0xf")
    a("s_nop 1","v_max_f32_dpp v6, v6, v6 row_bcast:15 row_mask:0xa bank_mask:0xf")
    a("s_nop 1","v_max_f32_dpp v6, v6, v6 row_bcast:31 row_mask:0xc bank_mask:0xf")
    a("s_nop 1", "v_mul_f32 v6, 0x3f810000, v6", "v_cmp_eq_u32 vcc, 63, v0", "v_mov_b32 v3, 0", "s_nop 0", "v_cndmask_b32 v3, v4, v3, vcc")
    a("s_lshl_b32 s23, s20, 2", f"s_add_u32 s23, s23, {hex(KMAX)}", f"buffer_store_dword v6, v3, {ws}, s23 offen")

def emit_a1(a,sW,sId,srdX,srdWS,sTAB):
    TB=40960; RP=1184
    AF=16
    BF=[56,60]; AC=[64,80]; OUTR=96
    TWc=[None,128,129,130]; TWs=[None,131,132,133]
    T=136; PK=160
    vA,vB=8,9; vC=[10,11,12,13]
    ws=sr(srdWS,4)
    for i in range(10):
        a(f"s_mul_i32 s20, s{sW}, 640", f"s_add_u32 s20, s20, {i*64}", "v_add_u32 v1, s20, v0")
        a("v_mul_u32_u24 v2, 3543, v1", "v_lshrrev_b32 v2, 18, v2", "v_mul_u32_u24 v3, 74, v2", "v_sub_u32 v3, v1, v3")
        a("v_lshrrev_b32 v4, 4, v2", "v_lshlrev_b32 v4, 4, v4", "v_and_b32 v5, 1, v2", "v_lshl_add_u32 v4, v5, 3, v4")
        a("v_bfe_u32 v5, v2, 3, 1", "v_lshl_add_u32 v4, v5, 2, v4", "v_bfe_u32 v5, v2, 1, 2", "v_add_u32 v4, v4, v5")
        a(f"v_lshlrev_b32 v4, 6, v4", f"v_add_u32 v4, s{sId}, v4", "v_mul_u32_u24 v4, 1152, v4", "v_lshl_add_u32 v4, v3, 4, v4")
        a("v_cmp_gt_u32 vcc, 72, v3", "v_cmp_gt_u32 s[22:23], 32, v2", "v_mov_b32 v5, 0x7ff00000", "s_and_b64 vcc, vcc, s[22:23]", "s_nop 1", "v_cndmask_b32 v4, v5, v4, vcc")
        a("s_lshl_b32 s21, s20, 4", "s_mov_b32 m0, s21", "s_nop 0", f"buffer_load_dwordx4 v4, {sr(srdX,4)}, 0 offen lds")
    a("v_lshlrev_b32 v6, 4, v0")
    for i in range(14):
        a(f"s_mul_i32 s20, s{sW}, 14", f"s_add_u32 s20, s20, {i}", "s_min_u32 s20, s20, 53", "s_lshl_b32 s20, s20, 10", f"s_add_u32 s21, s20, {TB}", "s_mov_b32 m0, s21", "s_nop 0")
        a(f"buffer_load_dwordx4 v6, {sr(sTAB,4)}, s20 offen lds")
    a("v_and_b32 v1, 15, v0", "v_lshrrev_b32 v2, 2, v1", "v_and_b32 v1, 3, v1", "v_lshrrev_b32 v3, 4, v0", "v_lshrrev_b32 v4, 1, v3", "v_and_b32 v3, 1, v3")
    a(f"s_lshl_b32 s20, s{sW}, 3", "v_lshl_add_u32 v3, v3, 2, v1", "v_add_u32 v3, s20, v3", f"v_mul_u32_u24 v3, {RP}, v3")
    a("v_lshl_add_u32 v4, v4, 3, v2", f"v_lshl_add_u32 v{vA}, v4, 3, v3")
    a(f"v_add_u32 v{vB}, {TB}, v6")
    a("s_waitcnt vmcnt(0)", "s_barrier")
    for st in range(9):
        for b in range(2): a(f"ds_read_b64_tr_b16 {vr(AF+4*st+2*b,2)}, v{vA} offset:{st*128+b*32}")
        if st%4==3: a("s_waitcnt lgkmcnt(0)")
    a("v_and_b32 v1, 31, v0", "v_lshrrev_b32 v2, 5, v0")
    a(f"s_lshl_b32 s24, s{sId}, 6", f"s_add_u32 s24, s24, {hex(X1T)}", "s_add_u32 s25, s24, 4096")
    a(f"s_lshl_b32 s20, s{sW}, 4", "v_lshlrev_b32 v3, 3, v2", "v_add_u32 v3, s20, v3")
    for ft in range(3):
        seq=[(p,st) for st in range(9) for p in range(2)]
        def rb(i):
            p,st=seq[i]; a(f"ds_read_b128 {vr(BF[i%2],4)}, v{vB} offset:{((ft*2+p)*9+st)*1024}")
        a("s_waitcnt lgkmcnt(0)"); rb(0)
        for i,(p,st) in enumerate(seq):
            if i+1<len(seq): rb(i+1); a("s_waitcnt lgkmcnt(1)")
            else: a("s_waitcnt lgkmcnt(0)")
            a(f"v_mfma_f32_32x32x16_bf16 {vr(AC[p],16)}, {vr(AF+4*st,4)}, {vr(BF[i%2],4)}, {'0' if st==0 else vr(AC[p],16)}")
        a(f"v_add_u32 v4, {32*ft}, v1", "v_cvt_f32_u32 v5, v4")
        for r in (1,2,3):
            a(f"v_mul_f32 v6, {hex(f2bits(r/576.0))}, v5", f"v_cos_f32 v{TWc[r]}, v6", f"v_sin_f32 v{TWs[r]}, v6")
        a("v_cmp_gt_u32 vcc, 73, v4", "v_mov_b32 v7, 0x7ff00000")
        for o,(sgn,base) in enumerate(((1,0),(1,144),(-1,288),(-1,144))):
            if sgn>0: a(f"v_add_u32 v6, {base}, v4")
            else: a(f"v_sub_u32 v6, {base}, v4")
            a("v_lshl_add_u32 v6, v6, 13, v3", f"v_cndmask_b32 v{vC[o]}, v7, v6, vcc")
        a("s_nop 3")
        R,I=AC
        for g in range(4):
            e=4*g
            for r in (1,2,3):
                c,s=TWc[r],TWs[r]
                a(f"v_mul_f32 v{T}, v{I+e+r}, v{s}", f"v_mul_f32 v{T+1}, v{R+e+r}, v{s}")
                a(f"v_fma_f32 v{R+e+r}, v{R+e+r}, v{c}, v{T}", f"v_fma_f32 v{I+e+r}, v{I+e+r}, v{c}, -v{T+1}")
            ar_,ai_,br,bi,cr,ci,dr,di=[T+2+i for i in range(8)]
            a(f"v_add_f32 v{ar_}, v{R+e}, v{R+e+2}", f"v_add_f32 v{ai_}, v{I+e}, v{I+e+2}", f"v_sub_f32 v{br}, v{R+e}, v{R+e+2}", f"v_sub_f32 v{bi}, v{I+e}, v{I+e+2}")
            a(f"v_add_f32 v{cr}, v{R+e+1}, v{R+e+3}", f"v_add_f32 v{ci}, v{I+e+1}, v{I+e+3}", f"v_sub_f32 v{dr}, v{R+e+1}, v{R+e+3}", f"v_sub_f32 v{di}, v{I+e+1}, v{I+e+3}")
            O=lambda o,p: OUTR+(o*2+p)*4+g
            a(f"v_add_f32 v{O(0,0)}, v{ar_}, v{cr}", f"v_add_f32 v{O(0,1)}, v{ai_}, v{ci}")
            a(f"v_add_f32 v{O(1,0)}, v{br}, v{di}", f"v_sub_f32 v{O(1,1)}, v{bi}, v{dr}")
            a(f"v_sub_f32 v{O(2,0)}, v{ar_}, v{cr}", f"v_sub_f32 v{O(2,1)}, v{ci}, v{ai_}")
            a(f"v_sub_f32 v{O(3,0)}, v{br}, v{di}", f"v_add_f32 v{O(3,1)}, v{bi}, v{dr}", f"v_sub_f32 v{O(3,1)}, 0, v{O(3,1)}")
        for o in range(4):
            for p in range(2):
                b=PK+(o*2+p)*2; s_=OUTR+(o*2+p)*4
                a(f"v_cvt_pk_bf16_f32 v{b}, v{s_}, v{s_+1}", f"v_cvt_pk_bf16_f32 v{b+1}, v{s_+2}, v{s_+3}")
                a(f"buffer_store_dwordx2 {vr(b,2)}, v{vC[o]}, {ws}, s{24+p} offen")
        a("s_nop 1")

def emit_w(a,sW,sId,srdR,srdI,srdWS):
    RUN=10240
    a(f"s_lshr_b32 s24, s{sId}, 1", f"s_and_b32 s25, s{sId}, 1")
    a("s_lshl_b32 s20, s24, 7", "s_lshl_b32 s21, s25, 4", "s_add_u32 s20, s20, s21", "s_mul_i32 s26, s20, 578")
    a("v_lshlrev_b32 v1, 4, v0")
    a(f"s_and_b32 s27, s{sW}, 1", f"s_lshr_b32 s28, s{sW}, 1")
    la=a.lab("wi"); lb=a.lab("wd")
    def issue(srd_):
        for jj in range(2):
            for i in range(10):
                a(f"s_lshl_b32 s20, s27, 1", f"s_add_u32 s20, s20, {jj}", f"s_mul_i32 s21, s20, {32*578}", "s_add_u32 s21, s21, s26", f"s_add_u32 s21, s21, {i*1024}")
                a(f"s_lshl_b32 s22, s28, 2", "s_add_u32 s22, s22, s20", f"s_mul_i32 s22, s22, {RUN}", f"s_add_u32 s22, s22, {i*1024}", "s_mov_b32 m0, s22", "s_nop 0")
                a(f"buffer_load_dwordx4 v1, {sr(srd_,4)}, s21 offen lds")
    a("s_cmp_eq_u32 s28, 1", f"s_cbranch_scc1 {la}")
    issue(srdR); a(f"s_branch {lb}", f"{la}:"); issue(srdI); a(f"{lb}:")
    a("v_and_b32 v2, 15, v0", "v_lshrrev_b32 v3, 4, v0", f"s_lshl_b32 s20, s{sW}, 2", "v_add_u32 v3, s20, v3")
    a("v_mul_u32_u24 v4, 578, v2", "v_lshl_add_u32 v4, v3, 1, v4", f"v_add_u32 v5, {4*RUN}, v4")
    a("s_lshr_b32 s20, s24, 1", "s_lshl_b32 s20, s20, 6", "s_and_b32 s21, s24, 1", "s_lshl_b32 s21, s21, 5", "s_add_u32 s20, s20, s21", "s_lshl_b32 s21, s25, 4", "s_add_u32 s20, s20, s21", "s_lshl_b32 s20, s20, 4", f"s_add_u32 s29, s20, {hex(WT)}")
    a("v_lshlrev_b32 v6, 13, v3", "v_lshl_add_u32 v6, v2, 4, v6", "v_mov_b32 v8, 0x7ff00000")
    a("s_waitcnt vmcnt(0)", "s_barrier")
    R=16
    for it0 in range(0,19,2):
        its=[it for it in (it0,it0+1) if it<19]
        for n,it in enumerate(its):
            for j in range(4):
                a(f"ds_read_u16 v{R+4*n+j}, v4 offset:{j*RUN+it*32}", f"ds_read_u16 v{R+32+4*n+j}, v5 offset:{j*RUN+it*32}")
            if n==0 and len(its)>1: a("s_waitcnt lgkmcnt(0)")
        a("s_waitcnt lgkmcnt(0)")
        for n,it in enumerate(its):
            for j in range(4): a(f"v_lshl_or_b32 v{R+4*n+j}, v{R+32+4*n+j}, 16, v{R+4*n+j}")
        for n,it in enumerate(its):
            a(f"v_add_u32 v7, {it*16}, v3", "v_cmp_gt_u32 vcc, 289, v7", f"v_add_u32 v9, {hex(it*16*8192)}, v6", "s_nop 0", "v_cndmask_b32 v9, v8, v9, vcc")
            a(f"buffer_store_dwordx4 {vr(R+4*n,4)}, v9, {sr(srdWS,4)}, s29 offen")
        R = 24 if R==16 else 16

def emit_k1(a):
    name="proj_kernel"; kernel_head(a,name)
    end=a.lab("end"); sW=16
    a(f"s_cmp_ge_u32 s2, {GRID}", f"s_cbranch_scc1 {end}")
    a("s_load_dwordx4 s[32:35], s[0:1], 0", "s_load_dwordx4 s[36:39], s[0:1], 16", "s_load_dwordx4 s[40:43], s[0:1], 32", "s_load_dwordx2 s[44:45], s[0:1], 48", "s_load_dwordx2 s[46:47], s[0:1], 80")
    wave_lane(a,sW)
    a("s_waitcnt lgkmcnt(0)")
    srd(a,8,46,WS_USED)
    lA1=a.lab("a1"); lKV=a.lab("kv"); lW=a.lab("w")
    a("s_cmp_ge_u32 s2, 224", f"s_cbranch_scc1 {lW}", "s_cmp_ge_u32 s2, 208", f"s_cbranch_scc1 {lKV}", "s_cmp_ge_u32 s2, 144", f"s_cbranch_scc1 {lA1}")
    srd(a,12,38,2048*1152); srd(a,48,40,576*1152)
    emit_gemm(a,sW,2,12,0,48,8,QS,1152,SCALE_Q)
    a(f"s_branch {end}")
    a(f"{lA1}:"); srd(a,12,32,2048*1152); table_srd(a,48,"tab_a1",A1_SIZE); a("s_sub_u32 s17, s2, 144")
    emit_a1(a,sW,17,12,8,48); a(f"s_branch {end}")
    a(f"{lKV}:"); srd(a,12,38,2048*1152); srd(a,48,42,576*36); srd(a,52,44,576*36); a("s_sub_u32 s17, s2, 208")
    emit_kv(a,sW,17,12,48,52,8); a(f"s_branch {end}")
    a(f"{lW}:"); srd(a,48,34,2048*578); srd(a,52,36,2048*578); a("s_sub_u32 s17, s2, 224")
    emit_w(a,sW,17,48,52,8)
    a(f"{end}:", "s_endpgm")
    kernel_desc(a,name,256)
```

```python
from common import *
from tables import *
K2_LDS = 4*CHUNK + 64
FLAG = 4*CHUNK
NFFT_WG = 73

def mfma(a,D,A,B,C=None):
    c = vr(D,16) if C is None else C
    a(f"v_mfma_f32_32x32x16_bf16 {vr(D,16)}, {vr(A,4)}, {vr(B,4)}, {c}")

def cmul_pk(a, ar_, ai_, c_, s_, t1, t2, conj):
    a(f"v_pk_mul_f32 {vr(t1,2)}, {vr(ai_,2)}, {vr(s_,2)}")
    a(f"v_pk_mul_f32 {vr(t2,2)}, {vr(ar_,2)}, {vr(s_,2)}")
    if not conj:
        a(f"v_pk_fma_f32 {vr(ar_,2)}, {vr(ar_,2)}, {vr(c_,2)}, {vr(t1,2)}")
        a(f"v_pk_fma_f32 {vr(ai_,2)}, {vr(ai_,2)}, {vr(c_,2)}, {vr(t2,2)} neg_lo:[0,0,1] neg_hi:[0,0,1]")
    else:
        a(f"v_pk_fma_f32 {vr(ar_,2)}, {vr(ar_,2)}, {vr(c_,2)}, {vr(t1,2)} neg_lo:[0,0,1] neg_hi:[0,0,1]")
        a(f"v_pk_fma_f32 {vr(ai_,2)}, {vr(ai_,2)}, {vr(c_,2)}, {vr(t2,2)}")

def emit_fft(a, sWS, sTAB, sCol):
    D=lambda t,p,q: 8+((t*2+p)*2+q)*4
    C=lambda q:40+4*q; S=lambda q:48+4*q; N=lambda q:56+4*q
    GF=lambda w,q:64+8*w+4*q; GI=lambda w,q:88+8*w+4*q
    AC=lambda t,p:112+(2*t+p)*16
    TW=lambda t,g,cs:176+((t*4+g)*2+cs)*4
    T1,T2,T3,T4,T5,T6=240,242,244,246,248,250
    vA,vL=1,2
    ws=sr(sWS,4); tb=sr(sTAB,4)
    a(f"s_lshl_b32 s20, s{sCol}, 13")
    a(f"s_add_u32 s21, s20, {hex(X1T)}")
    a(f"s_add_u32 s22, s20, {hex(WT)}")
    a(f"s_add_u32 s23, s20, {hex(ZT)}")
    a(f"v_and_b32 v3, 31, v0", f"v_lshrrev_b32 v4, 5, v0")
    a(f"v_lshlrev_b32 v{vA}, 7, v3", f"v_lshl_add_u32 v{vA}, v4, 4, v{vA}")
    a(f"v_lshlrev_b32 v{vL}, 4, v0")
    for t in range(2):
        for p in range(2):
            for q in range(2):
                off=p*4096+t*64+q*32
                so = "s21"
                if off>4095:
                    a(f"s_add_u32 s24, s21, {p*4096}"); so="s24"; off-=p*4096
                a(f"buffer_load_dwordx4 {vr(D(t,p,q),4)}, v{vA}, {ws}, {so} offen offset:{off}")
    def tload(reg, byteoff):
        a(f"s_mov_b32 s24, {byteoff & ~0xfff}")
        a(f"buffer_load_dwordx4 {vr(reg,4)}, v{vL}, {tb}, s24 offen offset:{byteoff & 0xfff}")
    for i in range(6): tload(40+4*i, i*1024)
    for t in range(2):
        for g in range(4):
            for cs in range(2): tload(TW(t,g,cs), A2_TW1+((t*4+g)*2+cs)*1024)
    for i in range(12): tload(64+4*i, (6+i)*1024)
    a("s_waitcnt vmcnt(28)")
    for t in range(2):
        mfma(a,AC(t,0),D(t,0,0),C(0),"0"); mfma(a,AC(t,1),D(t,1,0),C(0),"0")
        mfma(a,AC(t,0),D(t,0,1),C(1));     mfma(a,AC(t,1),D(t,1,1),C(1))
        for q in range(2):
            mfma(a,AC(t,0),D(t,1,q),S(q)); mfma(a,AC(t,1),D(t,0,q),N(q))
    a("s_waitcnt vmcnt(12)")
    def twid_pack(conj, tws):
        for t in range(2):
            if t==1 or True: pass
            for g in range(4):
                for jj in (0,2):
                    r=4*g+jj
                    cmul_pk(a, AC(t,0)+r, AC(t,1)+r, tws(t,g,0)+jj, tws(t,g,1)+jj, T1 if jj==0 else T3, T2 if jj==0 else T4, conj)
            for p in range(2):
                for u in range(2):
                    for i in range(4):
                        a(f"v_cvt_pk_bf16_f32 v{D(t,p,u)+i}, v{AC(t,p)+8*u+2*i}, v{AC(t,p)+8*u+2*i+1}")
    a("s_nop 7")
    twid_pack(False, TW)
    WR=lambda mt,g:176+(mt*4+g)*4
    for mt in range(2):
        for g in range(4):
            off=(mt*4+g)*1024
            if off>4095: a(f"s_add_u32 s24, s22, 4096"); a(f"buffer_load_dwordx4 {vr(WR(mt,g),4)}, v{vL}, {ws}, s24 offen offset:{off-4096}")
            else: a(f"buffer_load_dwordx4 {vr(WR(mt,g),4)}, v{vL}, {ws}, s22 offen offset:{off}")
    TW2a=lambda g,cs:208+(g*2+cs)*4
    TW2b=lambda g,cs:176+(g*2+cs)*4
    for g in range(4):
        for cs in range(2): tload(TW2a(g,cs), A2_TW2+((0*4+g)*2+cs)*1024)
    a("s_waitcnt vmcnt(16)")
    for t in range(2):
        cc=(C,S,N) if t==0 else (lambda q:GF(0,q),lambda q:GF(1,q),lambda q:GF(2,q))
        mfma(a,AC(t,0),cc[0](0),D(t,0,0),"0"); mfma(a,AC(t,1),cc[0](0),D(t,1,0),"0")
        mfma(a,AC(t,0),cc[0](1),D(t,0,1));     mfma(a,AC(t,1),cc[0](1),D(t,1,1))
        for u in range(2):
            mfma(a,AC(t,0),cc[1](u),D(t,1,u)); mfma(a,AC(t,1),cc[2](u),D(t,0,u))
    a("s_waitcnt vmcnt(8)", "s_nop 7", "s_nop 3")
    a("s_mov_b32 s25, 0xffff0000")
    for g in range(4):
        for jj in (0,2):
            r=4*g+jj
            er,ei,orr,oi=AC(0,0)+r,AC(0,1)+r,AC(1,0)+r,AC(1,1)+r
            a(f"v_pk_add_f32 {vr(T1,2)}, {vr(er,2)}, {vr(orr,2)}", f"v_pk_add_f32 {vr(T2,2)}, {vr(ei,2)}, {vr(oi,2)}")
            a(f"v_pk_add_f32 {vr(orr,2)}, {vr(er,2)}, {vr(orr,2)} neg_lo:[0,1] neg_hi:[0,1]", f"v_pk_add_f32 {vr(oi,2)}, {vr(ei,2)}, {vr(oi,2)} neg_lo:[0,1] neg_hi:[0,1]")
            for mt,(xr,xi) in enumerate(((T1,T2),(orr,oi))):
                w=WR(mt,g)+jj
                a(f"v_lshlrev_b32 v{T3}, 16, v{w}", f"v_lshlrev_b32 v{T3+1}, 16, v{w+1}")
                a(f"v_and_b32 v{T4}, s25, v{w}", f"v_and_b32 v{T4+1}, s25, v{w+1}")
                cmul_pk(a, xr, xi, T3, T4, T5, T6, True)
            a(f"v_pk_add_f32 {vr(er,2)}, {vr(T1,2)}, {vr(orr,2)}", f"v_pk_add_f32 {vr(ei,2)}, {vr(T2,2)}, {vr(oi,2)}")
            a(f"v_pk_add_f32 {vr(orr,2)}, {vr(T1,2)}, {vr(orr,2)} neg_lo:[0,1] neg_hi:[0,1]", f"v_pk_add_f32 {vr(oi,2)}, {vr(T2,2)}, {vr(oi,2)} neg_lo:[0,1] neg_hi:[0,1]")
    for g in range(4):
        for cs in range(2): tload(TW2b(g,cs), A2_TW2+((1*4+g)*2+cs)*1024)
    for t in range(2):
        for p in range(2):
            for u in range(2):
                for i in range(4):
                    a(f"v_cvt_pk_bf16_f32 v{D(t,p,u)+i}, v{AC(t,p)+8*u+2*i}, v{AC(t,p)+8*u+2*i+1}")
    a("s_nop 1")
    for t in range(2):
        cc=(C,S,N) if t==0 else (lambda q:GI(0,q),lambda q:GI(1,q),lambda q:GI(2,q))
        mfma(a,AC(t,0),D(t,0,0),cc[0](0),"0"); mfma(a,AC(t,1),D(t,1,0),cc[0](0),"0")
        mfma(a,AC(t,0),D(t,0,1),cc[0](1));     mfma(a,AC(t,1),D(t,1,1),cc[0](1))
        for u in range(2):
            mfma(a,AC(t,0),D(t,1,u),cc[2](u)); mfma(a,AC(t,1),D(t,0,u),cc[1](u))
    a("s_waitcnt vmcnt(0)", "s_nop 7", "s_nop 3")
    twid_pack(True, lambda t,g,cs: TW2a(g,cs) if t==0 else TW2b(g,cs))
    a("s_nop 1")
    for t in range(2):
        mfma(a,AC(t,0),D(t,0,0),C(0),"0"); mfma(a,AC(t,1),D(t,1,0),C(0),"0")
        mfma(a,AC(t,0),D(t,0,1),C(1));     mfma(a,AC(t,1),D(t,1,1),C(1))
        for u in range(2):
            mfma(a,AC(t,0),D(t,1,u),N(u)); mfma(a,AC(t,1),D(t,0,u),S(u))
    a("s_nop 7", "s_nop 3")
    for p in range(2):
        if p==1: a("s_add_u32 s23, s23, 4096")
        for g in range(4):
            b=D(0,0,0)+(p*4+g)*4
            for j in range(4):
                a(f"v_cvt_pk_bf16_f32 v{b+j}, v{AC(0,p)+4*g+j}, v{AC(1,p)+4*g+j}")
            a(f"buffer_store_dwordx4 {vr(b,4)}, v{vA}, {ws}, s23 offen offset:{32*g}")

def emit_k2(a):
    name="attn_kernel"
    kernel_head(a,name)
    S=[16,32]; O=48; P=64; T=[72,73]; Q1=76; Q2=80; K1=[84,88]; K2=[92,94]; V=[96,104]
    vK1,vK2,vV,vFl=2,3,4,5
    sWS,sTAB=8,12
    sW,sC,sSig=16,17,18
    end=a.lab("end")
    a("s_cmp_ge_u32 s2, 256", f"s_cbranch_scc1 {end}")
    a("s_load_dwordx2 s[4:5], s[0:1], 80")
    a("v_lshrrev_b32 v1, 6, v0", "v_and_b32 v0, 63, v0", f"v_readfirstlane_b32 s{sW}, v1")
    a(f"v_mov_b32 v{vFl}, {FLAG}", "v_mov_b32 v6, 0", "v_mov_b32 v7, 0")
    a(f"ds_write_b64 v{vFl}, v[6:7]", f"ds_write_b64 v{vFl}, v[6:7] offset:8")
    table_srd(a,sTAB,"tab_a2",A2_SIZE)
    a("s_waitcnt lgkmcnt(0)")
    srd(a,sWS,4,WS_USED)
    a("s_barrier")
    ws=sr(sWS,4)
    noload=a.lab("noload")
    a(f"s_cmp_lt_u32 s{sW}, 4", f"s_cbranch_scc1 {noload}")
    a(f"v_lshlrev_b32 v6, 4, v0")
    a(f"s_sub_u32 s20, s{sW}, 4", "s_lshl_b32 s20, s20, 10", f"s_mov_b32 s{sC}, 0")
    lp=a.lab("ld")
    a(f"{lp}:")
    a(f"s_add_u32 s21, s20, s{sC}")
    for i in range(10):
        if i<9:
            a(f"s_add_u32 s22, s21, {4096*i}")
        else:
            a(f"s_add_u32 s22, s{sC}, {36*1024}")
        a("s_mov_b32 m0, s22", f"s_add_u32 s23, s22, {hex(KVI)}")
        a(f"buffer_load_dwordx4 v6, {ws}, s23 offen lds")
    a(f"s_add_u32 s{sC}, s{sC}, {CHUNK}", f"s_cmp_lt_u32 s{sC}, {4*CHUNK}", f"s_cbranch_scc1 {lp}")
    a(f"{noload}:")
    nofft=a.lab("nofft")
    a(f"s_cmp_ge_u32 s{sW}, 4", f"s_cbranch_scc1 {nofft}")
    a(f"s_lshl_b32 s19, s2, 2", f"s_add_u32 s19, s19, s{sW}", "s_cmp_ge_u32 s19, 289", f"s_cbranch_scc1 {nofft}")
    emit_fft(a,sWS,sTAB,19)
    a(f"{nofft}:")
    a(f"s_lshl_b32 s20, s2, 3", f"s_add_u32 s20, s20, s{sW}", "s_mul_i32 s20, s20, 1152")
    a("v_and_b32 v6, 31, v0", "v_lshrrev_b32 v7, 5, v0")
    a("v_mul_u32_u24 v8, 36, v6", "v_lshl_add_u32 v9, v7, 3, v8")
    a(f"buffer_load_dwordx2 {vr(Q1,2)}, v9, {ws}, s20 offen", f"buffer_load_dwordx2 {vr(Q1+2,2)}, v9, {ws}, s20 offen offset:16")
    a(f"buffer_load_dword v{Q2}, v8, {ws}, s20 offen offset:32")
    a(f"v_lshlrev_b32 v10, 2, v0", f"s_mov_b32 s21, {hex(KMAX)}", f"buffer_load_dword v11, v10, {ws}, s21 offen")
    a(f"v_lshlrev_b32 v{vK1}, 4, v0", f"v_lshlrev_b32 v{vK2}, 2, v6")
    a("v_mov_b32 v12, v6", "v_cmp_lt_u32 vcc, 18, v6", "s_nop 1", "v_cndmask_b32 v12, v12, 18, vcc")
    a.l[-1]="  v_mov_b32 v13, 18"; a("v_cndmask_b32 v12, v12, v13, vcc")
    a("v_subrev_u32 v14, 20, v6", "v_cmp_gt_u32 vcc, 8, v14", "v_mov_b32 v13, 3", "s_nop 0", "v_cndmask_b32 v12, v12, v13, vcc")
    a("v_mul_u32_u24 v13, 19, v7", "v_add_u32 v12, v12, v13", f"v_lshlrev_b32 v{vV}, 4, v12")
    a(f"v_mov_b32 v{K2[0]+1}, 0x3f803f80", f"v_mov_b32 v{K2[1]+1}, 0x3f803f80", f"v_mov_b32 v{Q2+1}, 0")
    for r in range(16): a(f"v_mov_b32 v{O+r}, 0")
    def signal(upto_reg_cmp, c_expr_imm, vm):
        pass
    a(f"s_mov_b32 s{sSig}, 0")
    a("s_waitcnt vmcnt(0)")
    a("v_cmp_gt_u32 vcc, 32, v0", "s_nop 1", f"v_cndmask_b32 v{Q2}, 0, v{Q2}, vcc")
    EOFMARK=0
    nosig=a.lab("nosig")
    a(f"s_cmp_lt_u32 s{sW}, 4", f"s_cbranch_scc1 {nosig}")
    a("v_mov_b32 v13, 1")
    for c in range(4): a(f"ds_add_u32 v{vFl}, v13 offset:{4*c}")
    a(f"{nosig}:")
    a("v_mov_b32 v12, 0", "s_mov_b32 s21, 0xffff0000")
    for r in (Q1,Q1+1,Q1+2,Q1+3,Q2):
        a(f"v_lshlrev_b32 v13, 16, v{r}", f"v_and_b32 v14, s21, v{r}", "v_add_f32 v12, |v13|, v12", "v_add_f32 v12, |v14|, v12")
    a("v_mov_b32 v13, v12", "s_nop 1", "v_permlane32_swap_b32 v13, v12", "s_nop 1", "v_add_f32 v12, v12, v13")
    for sh in (1,2,4,8): a("s_nop 1", f"v_max_f32_dpp v11, v11, v11 row_shr:{sh} row_mask:0xf bank_mask:0xf")
    a("s_nop 1","v_max_f32_dpp v11, v11, v11 row_bcast:15 row_mask:0xa bank_mask:0xf")
    a("s_nop 1","v_max_f32_dpp v11, v11, v11 row_bcast:31 row_mask:0xc bank_mask:0xf")
    a("s_nop 1","v_readlane_b32 s21, v11, 63", "s_nop 1")
    a("v_mul_f32 v12, s21, v12", "v_mov_b32 v13, 0x42700000", "v_mov_b32 v14, s21")
    a("v_cmp_nlt_f32 vcc, v12, v13", "v_mov_b32 v13, 0x4e800000", "s_nop 0", "v_cmp_nlt_f32 s[22:23], v14, v13", "s_nop 1", "s_or_b64 vcc, vcc, s[22:23]")
    def poll(c):
        l=a.lab("poll")
        a(f"{l}:", f"ds_read_b32 v13, v{vFl} offset:{4*c}", "s_waitcnt lgkmcnt(0)", "v_readfirstlane_b32 s21, v13", "s_nop 0", "s_cmp_lt_u32 s21, 4", f"s_cbranch_scc1 {l}")
    fast=a.lab("fast")
    a("s_mov_b64 s[26:27], vcc")
    for c in range(4): poll(c)
    a("s_cmp_eq_u64 s[26:27], 0", f"s_cbranch_scc1 {fast}")
    a("v_mov_b32 v12, 0xff7fffff", f"v_mov_b32 v14, v{vK1}", f"v_mov_b32 v15, v{vK2}", "s_mov_b32 s20, 0")
    lc=a.lab("fbc"); lt=a.lab("fbt")
    a(f"{lc}:", "s_mov_b32 s21, 0", f"{lt}:")
    a(f"ds_read_b128 {vr(K1[0],4)}, v14", f"ds_read_b32 v{K2[0]}, v15 offset:16384", "s_waitcnt lgkmcnt(0)")
    a(f"v_mfma_f32_32x32x16_bf16 {vr(S[0],16)}, {vr(K1[0],4)}, {vr(Q1,4)}, 0")
    a(f"v_mfma_f32_32x32x8bf16_1k {vr(S[0],16)}, {vr(K2[0],2)}, {vr(Q2,2)}, {vr(S[0],16)}")
    a("v_add_u32 v14, 1024, v14", "v_add_u32 v15, 128, v15", "s_nop 7", "s_nop 3")
    for i in range(8): a(f"v_max3_f32 v12, v{S[0]+2*i}, v{S[0]+2*i+1}, v12")
    a("s_add_u32 s21, s21, 1", "s_cmp_lt_u32 s21, 16", f"s_cbranch_scc1 {lt}")
    a(f"v_add_u32 v14, {CHUNK-16384}, v14", f"v_add_u32 v15, {CHUNK-2048}, v15")
    a("s_add_u32 s20, s20, 1", "s_cmp_lt_u32 s20, 4", f"s_cbranch_scc1 {lc}")
    a("v_mov_b32 v13, v12", "s_nop 1", "v_permlane32_swap_b32 v13, v12", "s_nop 1", "v_max_f32 v12, v12, v13")
    a("v_xor_b32 v12, 0x80000000, v12", "v_and_b32 v13, 0xffff0000, v12", "v_sub_f32 v14, v12, v13")
    a("v_lshrrev_b32 v13, 16, v13", "v_and_b32 v14, 0xffff0000, v14", "v_or_b32 v13, v13, v14")
    a("v_cmp_gt_u32 vcc, 32, v0", "s_nop 1", f"v_cndmask_b32 v{Q2+1}, 0, v13, vcc")
    a(f"{fast}:")
    def rdK(buf,t):
        o = t*1024 if t<16 else CHUNK+(t-16)*1024
        o2= 16384+(t*128 if t<16 else CHUNK+(t-16)*128)
        a(f"ds_read_b128 {vr(K1[buf],4)}, v{vK1} offset:{o}", f"ds_read_b32 v{K2[buf]}, v{vK2} offset:{o2}")
    def rdV(buf,t):
        b = 18432+(t*1216 if t<16 else CHUNK+(t-16)*1216)
        a(f"ds_read_b128 {vr(V[buf],4)}, v{vV} offset:{b}", f"ds_read_b128 {vr(V[buf]+4,4)}, v{vV} offset:{b+608}")
    rdK(0,0); rdK(1,1); rdV(0,0)
    a("s_waitcnt lgkmcnt(0)")
    a(f"v_mfma_f32_32x32x16_bf16 {vr(S[0],16)}, {vr(K1[0],4)}, {vr(Q1,4)}, 0")
    a(f"v_mfma_f32_32x32x8bf16_1k {vr(S[0],16)}, {vr(K2[0],2)}, {vr(Q2,2)}, {vr(S[0],16)}")
    a("s_nop 7","s_nop 7", f"s_mov_b32 s{sC}, 0")
    loop=a.lab("chunk")
    a(f"{loop}:")
    def exps(Sc, half):
        i0=4*half
        seq=[]
        for i in range(i0,i0+4):
            seq.append(f"v_exp_f32 v{T[i%2]}, v{Sc+2*i}")
            seq.append(f"v_exp_f32 v{P+i}, v{Sc+2*i+1}")
            seq.append(f"v_mov_b32_sdwa v{P+i}, v{T[i%2]} dst_sel:WORD_0 dst_unused:UNUSED_PRESERVE src0_sel:WORD_1")
        out=[seq[0],seq[1]]
        for i in range(1,4): out += [seq[3*i], seq[3*(i-1)+2], seq[3*i+1]]
        return out, seq[11]
    for tt in range(16):
        cur,nx=tt%2,(tt+1)%2
        a("s_waitcnt lgkmcnt(0)")
        a(f"v_mfma_f32_32x32x16_bf16 {vr(S[nx],16)}, {vr(K1[nx],4)}, {vr(Q1,4)}, 0")
        e0,l0=exps(S[cur],0); e1,l1=exps(S[cur],1)
        a(*e0[:2])
        rdV(nx,tt+1)
        a(*e0[2:5])
        a(f"v_mfma_f32_32x32x8bf16_1k {vr(S[nx],16)}, {vr(K2[nx],2)}, {vr(Q2,2)}, {vr(S[nx],16)}")
        a(*e0[5:])
        a(e1[0]); a(l0); a(e1[1])
        rdK(cur,tt+2)
        a(e1[2])
        a(f"v_mfma_f32_32x32x16_bf16 {vr(O,16)}, {vr(V[cur],4)}, {vr(P,4)}, {vr(O,16)}")
        a(*e1[3:])
        a("s_nop 0"); a(l1); a("s_nop 1")
        a(f"v_mfma_f32_32x32x16_bf16 {vr(O,16)}, {vr(V[cur]+4,4)}, {vr(P+4,4)}, {vr(O,16)}")
    a(f"v_add_u32 v{vK1}, {CHUNK}, v{vK1}", f"v_add_u32 v{vK2}, {CHUNK}, v{vK2}", f"v_add_u32 v{vV}, {CHUNK}, v{vV}")
    a(f"s_add_u32 s{sC}, s{sC}, 1", f"s_cmp_lt_u32 s{sC}, 4", f"s_cbranch_scc1 {loop}")
    a("s_waitcnt lgkmcnt(0)", "s_nop 7", "s_nop 7")
    a(f"v_mov_b32 v12, v{O+10}", f"v_mov_b32 v13, v{O+10}", "s_nop 1", "v_permlane32_swap_b32 v12, v13", "s_nop 1", "v_rcp_f32 v12, v12", "s_nop 0")
    for r in range(10): a(f"v_mul_f32 v{O+r}, v{O+r}, v12")
    for i in range(5): a(f"v_cvt_pk_bf16_f32 v{P+i}, v{O+2*i}, v{O+2*i+1}")
    a(f"s_lshl_b32 s20, s2, 3", f"s_add_u32 s20, s20, s{sW}", "s_mul_i32 s20, s20, 1152", f"s_add_u32 s20, s20, {hex(OB)}")
    a(f"buffer_store_dwordx2 {vr(P,2)}, v9, {ws}, s20 offen", f"buffer_store_dwordx2 {vr(P+2,2)}, v9, {ws}, s20 offen offset:16")
    a("v_cmp_gt_u32 vcc, 32, v0", "s_and_saveexec_b64 s[22:23], vcc", f"buffer_store_dword v{P+4}, v8, {ws}, s20 offen offset:32", "s_mov_b64 exec, s[22:23]")
    a(f"{end}:", "s_endpgm")
    kernel_desc(a,name,256)
```

```python
from common import *
from tables import *
from gemm import *
NA3=86; GRID=144+NA3; LDS=147456
def emit_a3(a,sW,sId,srdWS,srdO,sTAB):
    TB=40960; P=240
    L=16; U=48; S=64; TW=[None,80,82,84]; T=86; PK=90
    vZ=[8,9,10,11]; vW=12; vA=13; vB=14; vO=15
    ws=sr(srdWS,4)
    a(f"s_lshl_b32 s20, s{sW}, 6","v_add_u32 v1, s20, v0","v_mul_u32_u24 v2, 21846, v1","v_lshrrev_b32 v2, 16, v2","v_mul_u32_u24 v3, 3, v2","v_sub_u32 v3, v1, v3")
    a(f"s_mul_i32 s24, s{sId}, 48", f"s_add_u32 s24, s24, {hex(ZT)}", "s_add_u32 s25, s24, 4096")
    a("v_cmp_gt_u32 vcc, 73, v2","v_lshlrev_b32 v4, 4, v3","v_mov_b32 v7, 0x7ff00000")
    for o,(sgn,base) in enumerate(((1,0),(1,144),(-1,288),(-1,144))):
        if sgn>0: a(f"v_add_u32 v6, {base}, v2")
        else: a(f"v_sub_u32 v6, {base}, v2")
        a("v_lshl_add_u32 v6, v6, 13, v4", f"v_cndmask_b32 v{vZ[o]}, v7, v6, vcc")
    for o in range(4):
        for p in range(2): a(f"buffer_load_dwordx4 {vr(L+(o*2+p)*4,4)}, v{vZ[o]}, {ws}, s{24+p} offen")
    a("v_lshlrev_b32 v6, 4, v0")
    for i in range(13):
        a(f"s_mul_i32 s20, s{sW}, 13", f"s_add_u32 s20, s20, {i}", "s_min_u32 s20, s20, 49", "s_lshl_b32 s20, s20, 10", f"s_add_u32 s21, s20, {TB}", "s_mov_b32 m0, s21", "s_nop 0")
        a(f"buffer_load_dwordx4 v6, {sr(sTAB,4)}, s20 offen lds")
    a(f"v_add_u32 v{vB}, {TB}, v6")
    a("v_mov_b32 v48, 0","v_mov_b32 v49, 0","v_mov_b32 v50, 0","v_mov_b32 v51, 0", f"v_lshlrev_b32 v5, 4, v1", f"v_add_u32 v5, {146*P}, v5", "v_min_u32 v5, %d, v5"%(160*P-16), "ds_write_b128 v5, v[48:51]")
    a(f"v_mul_u32_u24 v5, {P}, v2", "v_mul_u32_u24 v6, 80, v3", "v_add_u32 v5, v5, v6", f"v_mov_b32 v7, {TB+51200}", f"v_cndmask_b32 v{vW}, v7, v5, vcc")
    a("v_cvt_f32_u32 v5, v2")
    for r in (1,2,3): a(f"v_mul_f32 v6, {hex(f2bits(r/576.0))}, v5", f"v_cos_f32 v{TW[r]}, v6", f"v_sin_f32 v{TW[r]+1}, v6")
    a("v_and_b32 v1, 15, v0", "v_lshrrev_b32 v2, 2, v1", "v_and_b32 v1, 3, v1", "v_lshrrev_b32 v3, 4, v0", "v_lshrrev_b32 v4, 1, v3", "v_and_b32 v3, 1, v3")
    a("v_lshl_add_u32 v4, v4, 3, v2", f"v_mul_u32_u24 v4, {P}, v4", "v_lshl_add_u32 v4, v3, 5, v4", f"v_lshl_add_u32 v{vA}, v1, 3, v4")
    a("s_waitcnt vmcnt(13)")
    pr=lambda x: vr(x,2)
    def add(d,x,y): a(f"v_pk_add_f32 {pr(d)}, {pr(x)}, {pr(y)}")
    def sub(d,x,y): a(f"v_pk_add_f32 {pr(d)}, {pr(x)}, {pr(y)} neg_lo:[0,1] neg_hi:[0,1]")
    for i in range(4):
        for st in range(8):
            a(f"v_lshlrev_b32 v{U+2*st}, 16, v{L+4*st+i}", f"v_and_b32 v{U+2*st+1}, 0xffff0000, v{L+4*st+i}")
        z0r,z0i,z1r,z1i,x2r,x2i,x3r,x3i=[U+2*s_ for s_ in range(8)]
        ar_,ai_,br,bi,cr,ci,dr,di=[S+2*s_ for s_ in range(8)]
        add(ar_,z0r,x2r); sub(ai_,z0i,x2i); sub(br,z0r,x2r); add(bi,z0i,x2i)
        add(cr,z1r,x3r); sub(ci,z1i,x3i); sub(dr,z1r,x3r); add(di,z1i,x3i)
        Sg=lambda r,p: U+2*(2*r+p)
        add(Sg(0,0),ar_,cr); add(Sg(0,1),ai_,ci); sub(Sg(2,0),ar_,cr); sub(Sg(2,1),ai_,ci)
        sub(Sg(1,0),br,di); add(Sg(1,1),bi,dr); add(Sg(3,0),br,di); sub(Sg(3,1),bi,dr)
        for r in (1,2,3):
            c="op_sel:[0,0] op_sel_hi:[1,0]"; s_="op_sel:[0,1] op_sel_hi:[1,1]"
            c3="op_sel:[0,0,0] op_sel_hi:[1,0,1]"
            a(f"v_pk_mul_f32 {pr(T)}, {pr(Sg(r,1))}, {pr(TW[r])} {s_}", f"v_pk_mul_f32 {pr(T+2)}, {pr(Sg(r,0))}, {pr(TW[r])} {s_}")
            a(f"v_pk_fma_f32 {pr(Sg(r,0))}, {pr(Sg(r,0))}, {pr(TW[r])}, {pr(T)} {c3} neg_lo:[0,0,1] neg_hi:[0,0,1]")
            a(f"v_pk_fma_f32 {pr(Sg(r,1))}, {pr(Sg(r,1))}, {pr(TW[r])}, {pr(T+2)} {c3}")
        for p in range(2):
            b=PK+4*p+8*(i%2)
            for e in range(2):
                a(f"v_cvt_pk_bf16_f32 v{b+2*e}, v{Sg(0,p)+e}, v{Sg(1,p)+e}", f"v_cvt_pk_bf16_f32 v{b+2*e+1}, v{Sg(2,p)+e}, v{Sg(3,p)+e}")
            a(f"ds_write_b128 v{vW}, {vr(b,4)} offset:{16*i+p*73*P}")
    a("s_waitcnt vmcnt(0) lgkmcnt(0)", "s_barrier")
    AF=16; BF=[96,100,104,108]; AC=[64,80]; PKo=112
    a("v_and_b32 v1, 31, v0", "v_lshrrev_b32 v2, 5, v0", "v_mul_u32_u24 v2, 2304, v2", f"v_lshl_add_u32 v{vO}, v1, 3, v2")
    a(f"s_mul_i32 s26, s{sId}, {24*2304}")
    def store(acc,sOff,vreg,nt):
        for g in range(4):
            b=PKo+2*g
            a(f"v_cvt_pk_bf16_f32 v{b}, v{acc+4*g}, v{acc+4*g+1}", f"v_cvt_pk_bf16_f32 v{b+1}, v{acc+4*g+2}, v{acc+4*g+3}")
            a(f"s_add_u32 s27, s{sOff}, {2*g*2304}", f"buffer_store_dwordx2 {vr(b,2)}, v{vreg}, {sr(srdO,4)}, s27 offen offset:{nt*256}")
    l3=a.lab("w3"); ld=a.lab("a3d")
    a(f"s_cmp_eq_u32 s{sW}, 3", f"s_cbranch_scc1 {l3}")
    a(f"s_mul_i32 s20, s{sW}, 80", f"v_add_u32 v{vA}, s20, v{vA}", f"s_mul_i32 s21, s{sW}, {8*2304}", "s_add_u32 s26, s26, s21")
    for st in range(10):
        for b in range(2): a(f"ds_read_b64_tr_b16 {vr(AF+4*st+2*b,2)}, v{vA} offset:{(16*st+4*b)*P}")
        if st in (5,9): a("s_waitcnt lgkmcnt(0)")
    for n2 in range(2):
        seq=[(p,st) for st in range(10) for p in range(2)]
        def rd(i,b): p,st=seq[i]; a(f"ds_read_b128 {vr(BF[b],4)}, v{vB} offset:{((2*n2+p)*10+st)*1024}")
        def use(i,b):
            p,st=seq[i]; a(f"v_mfma_f32_32x32x16_bf16 {vr(AC[p],16)}, {vr(AF+4*st,4)}, {vr(BF[b],4)}, {'0' if st==0 else vr(AC[p],16)}")
        pipe(a,20,rd,use,3)
        a("s_nop 7","s_nop 3")
        store(AC[0],26,vO,2*n2)
        store(AC[1],26,vO,2*n2+1)
        a("s_nop 1")
    a(f"s_branch {ld}", f"{l3}:")
    a("v_cmp_gt_u32 vcc, 16, v1", "v_mov_b32 v7, 0x7ff00000", "s_nop 0", f"v_cndmask_b32 v{vO}, v7, v{vO}, vcc")
    BB=96
    for st in range(10): a(f"ds_read_b128 {vr(BB+4*st,4)}, v{vB} offset:{(40+st)*1024}")
    AC3=[136,152,168]; PK3=184
    AFs=[16,20,24,28]
    seq=[(m,st) for st in range(10) for m in range(3)]
    a("s_waitcnt lgkmcnt(0)")
    def rd2(i):
        m,st=seq[i]
        for b in range(2): a(f"ds_read_b64_tr_b16 {vr(AFs[i%4]+2*b,2)}, v{vA} offset:{(16*st+4*b)*P+80*m}")
    for i in range(3): rd2(i)
    for i,(m,st) in enumerate(seq):
        if i+3<len(seq): rd2(i+3)
        a(f"s_waitcnt lgkmcnt({2*min(3,len(seq)-1-i)})")
        a(f"v_mfma_f32_32x32x16_bf16 {vr(AC3[m],16)}, {vr(AFs[i%4],4)}, {vr(BB+4*st,4)}, {'0' if st==0 else vr(AC3[m],16)}")
    a("s_nop 7","s_nop 3")
    for m in range(3):
        for g in range(4):
            b=PK3+2*(4*m+g); acc=AC3[m]
            a(f"v_cvt_pk_bf16_f32 v{b}, v{acc+4*g}, v{acc+4*g+1}", f"v_cvt_pk_bf16_f32 v{b+1}, v{acc+4*g+2}, v{acc+4*g+3}")
            a(f"s_add_u32 s27, s26, {(8*m+2*g)*2304}", f"buffer_store_dwordx2 {vr(b,2)}, v{vO}, {sr(srdO,4)}, s27 offen offset:{4*256}")
    a(f"{ld}:")

def emit_k3(a):
    name="outp_kernel"; kernel_head(a,name)
    end=a.lab("end"); sW=16
    a(f"s_cmp_ge_u32 s2, {GRID}", f"s_cbranch_scc1 {end}")
    a("s_load_dwordx2 s[40:41], s[0:1], 56", "s_load_dwordx2 s[42:43], s[0:1], 64", "s_load_dwordx2 s[46:47], s[0:1], 80")
    wave_lane(a,sW)
    a("s_waitcnt lgkmcnt(0)")
    srd(a,8,46,WS_USED); srd(a,12,42,2048*2304)
    lA=a.lab("a3")
    a(f"s_cmp_lt_u32 s2, {NA3}", f"s_cbranch_scc1 {lA}")
    srd(a,48,40,576*1152); a(f"s_sub_u32 s17, s2, {NA3}")
    emit_gemm(a,sW,17,8,OB,48,12,1152,2304,None)
    a(f"s_branch {end}")
    a(f"{lA}:"); table_srd(a,48,"tab_a3",A3_SIZE)
    emit_a3(a,sW,2,8,12,48)
    a(f"{end}:", "s_endpgm")
    kernel_desc(a,name,256)
```

```python
from common import *
pi2=2*math.pi
def tab_a2():
    fr=[]
    for sgn,fn in ((1,math.cos),(1,math.sin),(-1,math.sin)):
        for q in range(2): fr.append(frag_from(lambda m,k: sgn*fn(pi2*m*(16*q+k)/32), True))
    for sgn,fn in ((1,math.cos),(1,math.sin),(-1,math.sin)):
        for q in range(2): fr.append(frag_from(lambda mp,k: sgn*fn(pi2*(2*(16*q+k)+1)*mp/64), True))
    for sgn,fn in ((1,math.cos),(1,math.sin),(-1,math.sin)):
        for q in range(2): fr.append(frag_from(lambda m,k: sgn*fn(pi2*(2*m+1)*(16*q+k)/64), True))
    fr=np.stack(fr).reshape(-1).view(np.uint32)
    tw1=np.zeros((2,4,2,64,4),dtype=np.float32); tw2=np.zeros_like(tw1)
    for t in range(2):
        for g in range(4):
            for l in range(64):
                h,n=l//32,l%32
                for j in range(4):
                    r=8*g+4*h+j
                    an=pi2*((2*r+t)*n)/2048
                    tw1[t,g,0,l,j]=math.cos(an); tw1[t,g,1,l,j]=math.sin(an)
                    an=pi2*((2*n+t)*r)/2048
                    tw2[t,g,0,l,j]=math.cos(an); tw2[t,g,1,l,j]=math.sin(an)
    return np.concatenate([fr, tw1.reshape(-1).view(np.uint32), tw2.reshape(-1).view(np.uint32)])
A2_TW1=18*1024; A2_TW2=A2_TW1+16384; A2_SIZE=A2_TW2+16384

def tab_a1():
    fr=[]
    for ft in range(3):
        for p in range(2):
            for st in range(9):
                if p==0: fr.append(frag_from(lambda n,k: math.cos(pi2*(((16*st+k)*(32*ft+n))%144)/144), False))
                else:    fr.append(frag_from(lambda n,k: -math.sin(pi2*(((16*st+k)*(32*ft+n))%144)/144), False))
    return np.stack(fr).reshape(-1).view(np.uint32)
A1_SIZE=54*1024

def tab_a3():
    nrm=1.0/(2048.0*576.0)
    def val(dp,k):
        if dp>=144 or k>=146: return 0.0
        p,f0=(0,k) if k<73 else (1,k-73)
        al = 1.0 if f0 in (0,72) else 2.0
        an=pi2*((f0*dp)%144)/144
        return al*nrm*(math.cos(an) if p==0 else -math.sin(an))
    fr=[]
    for nt in range(5):
        for st in range(10):
            fr.append(frag_from(lambda n,k: val(32*nt+n,16*st+k), False))
    return np.stack(fr).reshape(-1).view(np.uint32)
A3_SIZE=50*1024
```

```python
import sys, importlib
sys.path.insert(0,'gen')
from common import *
from tables import *
HDR="""; Kernarg layout: 0 A_x, 8 A_w_r, 16 A_w_i, 24 B_x, 32 B_wq, 40 B_wk, 48 B_wv, 56 B_wo, 64 d_out, 72 d_debug, 80 d_ws
"""
def build(kernels, path):
    import k2
    a=Asm()
    launches=[]
    mods={}
    for k in kernels:
        if k=='k1':
            import k1; launches.append(f"; @launch kernel=proj_kernel grid=({k1.GRID},1,1) block=(256,1,1) lds={k1.LDS}")
        if k=='k2': launches.append(f"; @launch kernel=attn_kernel grid=(256,1,1) block=(512,1,1) lds={k2.K2_LDS}")
        if k=='k3':
            import k3; launches.append(f"; @launch kernel=outp_kernel grid=({k3.GRID},1,1) block=(256,1,1) lds={k3.LDS}")
    a.l.append('.amdgcn_target "amdgcn-amd-amdhsa--gfx950"')
    if 'k1' in kernels:
        import k1; k1.emit_k1(a)
    if 'k2' in kernels: k2.emit_k2(a)
    if 'k3' in kernels:
        import k3; k3.emit_k3(a)
    a.l.append('.text')
    if 'k1' in kernels: emit_data(a,'tab_a1',tab_a1())
    if 'k2' in kernels: emit_data(a,'tab_a2',tab_a2())
    if 'k3' in kernels: emit_data(a,'tab_a3',tab_a3())
    open(path,'w').write(HDR+'\n'.join(launches)+'\n'+a.text())
if __name__=='__main__':
    build(sys.argv[2:], sys.argv[1])
```

```python
import numpy as np, math, os
NAME="concat_heads__spectral_gfnet__grouped_kv_mqa__prompt"
QS   = 0x000000
KVI  = 0x240000
KMAX = 0x270000
OB   = 0x280000
X1T  = 0x4C0000
WT   = 0x710000
ZT   = 0x960000
WS_USED = 0xD00000 if os.environ.get('PROF') else 0xC00000
PROF_ON = bool(os.environ.get('PROF'))
PROFB = 0xC00000
CHUNK = 37888
ZBLK = 2*289*48
ZPL = 289*48
SCALE_Q = math.log2(math.e)/math.sqrt(18.0)

class Asm:
    def __init__(s): s.l=[]; s.n=0
    def __call__(s, *lines):
        for x in lines:
            for y in x.split('\n'):
                y=y.strip()
                if y: s.l.append(y if y.endswith(':') else '  '+y)
    def lab(s, p):
        s.n+=1; return f"L_{p}_{s.n}"
    def text(s): return '\n'.join(s.l)+'\n'

def vr(a,n=1): return f"v{a}" if n==1 else f"v[{a}:{a+n-1}]"
def sr(a,n=1): return f"s{a}" if n==1 else f"s[{a}:{a+n-1}]"
def ar(a,n=1): return f"a{a}" if n==1 else f"a[{a}:{a+n-1}]"

def f2bits(x): return int(np.float32(x).view(np.uint32))
def bf16_bits(a):
    a=np.asarray(a,dtype=np.float32); u=a.view(np.uint32).astype(np.uint64)
    r=(u+0x7FFF+((u>>16)&1))>>16
    return r.astype(np.uint16)
def bf16_to_f32(u): return (np.asarray(u,dtype=np.uint16).astype(np.uint32)<<16).view(np.float32)

def srd(a, s, base, nbytes):
    a(f"s_mov_b32 s{s}, s{base}", f"s_and_b32 s{s+1}, s{base+1}, 0xffff", f"s_mov_b32 s{s+2}, {hex(nbytes)}", f"s_mov_b32 s{s+3}, 0x20000")

def srd_off(a, s, base, off, nbytes):
    a(f"s_add_u32 s{s}, s{base}, {hex(off)}", f"s_addc_u32 s{s+1}, s{base+1}, 0", f"s_and_b32 s{s+1}, s{s+1}, 0xffff",
      f"s_mov_b32 s{s+2}, {hex(nbytes)}", f"s_mov_b32 s{s+3}, 0x20000")

def table_srd(a, s, label, nbytes):
    l=a.lab("pc")
    a(f"s_getpc_b64 s[{s}:{s+1}]", f"{l}:", f"s_add_u32 s{s}, s{s}, {label}-{l}", f"s_addc_u32 s{s+1}, s{s+1}, 0",
      f"s_and_b32 s{s+1}, s{s+1}, 0xffff", f"s_mov_b32 s{s+2}, {hex(nbytes)}", f"s_mov_b32 s{s+3}, 0x20000")

def sig(h,j): return 8*(j//4)+4*h+(j%4)

def frag_from(fn, perm):
    out=np.zeros((64,8),dtype=np.float32)
    for l in range(64):
        h,m=l//32,l%32
        for j in range(8):
            k = sig(h,j) if perm else 8*h+j
            out[l,j]=fn(m,k)
    return bf16_bits(out)

def emit_data(a, label, arr_u32):
    a.l.append(f".p2align 8"); a.l.append(f".type {label},@object"); a.l.append(f"{label}:")
    arr=np.asarray(arr_u32,dtype=np.uint32).ravel()
    assert len(arr)%2==0
    q=arr[0::2].astype(np.uint64)|(arr[1::2].astype(np.uint64)<<np.uint64(32))
    for i in range(0,len(q),16):
        a.l.append(".quad "+",".join(hex(int(x)) for x in q[i:i+16]))
    a.l.append(f".size {label}, {len(arr)*4}")

def kernel_desc(a, name, vgpr, sgpr=102, accum=None):
    accum = accum if accum else ((vgpr+3)//4*4)
    a.l.append('.section .rodata,"a"'); a.l.append('.p2align 6'); a.l.append(f'.amdhsa_kernel {name}')
    for x in [f'.amdhsa_next_free_vgpr {vgpr}', f'.amdhsa_next_free_sgpr {sgpr}', f'.amdhsa_accum_offset {accum}',
              '.amdhsa_group_segment_fixed_size 0','.amdhsa_kernarg_size 88','.amdhsa_user_sgpr_count 2',
              '.amdhsa_user_sgpr_kernarg_segment_ptr 1','.amdhsa_system_sgpr_workgroup_id_x 1',
              '.amdhsa_float_denorm_mode_32 3']:
        a.l.append('  '+x)
    a.l.append('.end_amdhsa_kernel'); a.l.append('.text')

def kernel_head(a, name):
    a.l += ['.text', f'.globl {name}', '.p2align 8', f'.type {name},@function', f'{name}:']

def stamp(a,i):
    if PROF_ON: a(f"s_memrealtime s[{60+2*i}:{61+2*i}]")
def stampc(a,i):
    if PROF_ON: a(f"s_memtime s[{60+2*i}:{61+2*i}]")
def stamp_flush(a,kidx,sW,srdWS,n,last=None):
    if not PROF_ON: return
    stamp(a,n-1 if last is None else last)
    a("s_waitcnt lgkmcnt(0)", "s_lshl_b32 s20, s2, 3", f"s_add_u32 s20, s20, s{sW}", "s_lshl_b32 s20, s20, 6", f"s_add_u32 s20, s20, {hex(PROFB+kidx*0x20000)}")
    a("v_mbcnt_lo_u32_b32 v1, -1, 0","v_mbcnt_hi_u32_b32 v1, -1, v1","v_mov_b32 v2, 0x7ff00000","v_cmp_eq_u32 vcc, 0, v1","v_mov_b32 v3, 0","s_nop 0","v_cndmask_b32 v2, v2, v3, vcc")
    for i in range(n):
        a(f"v_mov_b32 v3, s{60+2*i}", f"buffer_store_dword v3, v2, {sr(srdWS,4)}, s20 offen offset:{4*i}", "s_nop 1")
```

```python
from common import *
STG=24576; NST=6
PRE=int(os.environ.get('PRE','3'))
def wave_lane(a, sW):
    a("v_lshrrev_b32 v1, 6, v0", "v_and_b32 v0, 63, v0", "s_nop 0", f"v_readfirstlane_b32 s{sW}, v1")

def x_dma_setup(a, sW, vX, RS):
    a(f"v_lshrrev_b32 v1, 3, v0", f"v_and_b32 v2, 7, v0", "v_lshrrev_b32 v3, 1, v1", "v_xor_b32 v2, v2, v3", "v_lshlrev_b32 v2, 4, v2")
    a(f"s_lshl_b32 s20, s{sW}, 5", "v_add_u32 v1, s20, v1", f"s_mov_b32 s20, {RS}", f"v_mul_lo_u32 v1, v1, s20", f"v_add_u32 v{vX}, v1, v2", f"v_xor_b32 v15, 64, v{vX}")

def x_dma(a, srdX, vX, sOff, sLds, RS, kc, stage, stgsz):
    for i in range(4):
        a(f"s_add_u32 s21, s{sLds}, {stage*stgsz+i*1024}", "s_mov_b32 m0, s21", f"s_add_u32 s22, s{sOff}, {kc*128+i*8*RS}")
        a(f"buffer_load_dwordx4 v{vX if i%2==0 else 15}, {sr(srdX,4)}, s22 offen lds")

def x_frag_addr(a, sW, regs):
    a("v_and_b32 v1, 31, v0", "v_lshrrev_b32 v2, 5, v0", "v_bfe_u32 v3, v1, 1, 3")
    a(f"s_lshl_b32 s20, s{sW}, 12", "v_lshlrev_b32 v1, 7, v1", "v_add_u32 v1, s20, v1")
    for ks in range(4):
        a(f"v_add_u32 v4, {2*ks}, v2", "v_xor_b32 v4, v4, v3", f"v_lshl_add_u32 v{regs[ks]}, v4, 4, v1")

def store_tile_bf16(a, acc, srdO, vO, sO, scale, tmp):
    if scale is not None:
        a(f"s_mov_b32 s20, {hex(f2bits(scale))}")
        for r in range(32): a(f"v_mul_f32 v{acc+r}, s20, v{acc+r}")
    for nt in range(2):
        for gp in range(2):
            b=tmp+(nt*2+gp)*4; r=acc+nt*16+gp*8
            for i in range(4): a(f"v_cvt_pk_bf16_f32 v{b+i}, v{r+2*i}, v{r+2*i+1}")
            a("s_nop 1", f"v_permlane32_swap_b32 v{b}, v{b+2}", f"v_permlane32_swap_b32 v{b+1}, v{b+3}")
            a(f"buffer_store_dwordx4 {vr(b,4)}, v{vO}, {sr(srdO,4)}, s{sO} offen offset:{nt*64+gp*32}")

def emit_gemm(a, sW, sId, srdX, xoff, srdW, srdO, ooff, oRS, scale):
    RS=1152
    vX,vWd=5,6; xa=[8,9,10,11]; wa=[12,13]; vO=14
    XF=[16,20]; WF=[24,32]; ACC=48; TMP=80
    sRow,sCol,sXo,sWo,sL,sL2=24,25,26,27,28,29
    a(f"s_and_b32 s20, s{sId}, 7", f"s_lshr_b32 s21, s{sId}, 3", "s_and_b32 s22, s21, 1", "s_lshl_b32 s20, s20, 1", f"s_add_u32 s{sRow}, s20, s22", f"s_lshr_b32 s{sCol}, s{sId}, 4")
    a(f"s_mul_i32 s{sXo}, s{sRow}, {128*RS}", f"s_add_u32 s{sXo}, s{sXo}, {hex(xoff)}" , f"s_lshl_b32 s{sWo}, s{sCol}, 7")
    a(f"s_lshl_b32 s{sL}, s{sW}, 12", f"s_lshl_b32 s{sL2}, s{sW}, 11")
    x_dma_setup(a,sW,vX,RS)
    a("v_lshrrev_b32 v1, 3, v0", "v_and_b32 v2, 7, v0", "v_lshrrev_b32 v3, 1, v1", "v_and_b32 v3, 1, v3", "v_lshlrev_b32 v3, 2, v3", "v_xor_b32 v2, v2, v3", "v_lshlrev_b32 v2, 4, v2")
    a(f"s_lshl_b32 s20, s{sW}, 4", "v_add_u32 v1, s20, v1", f"s_mov_b32 s20, {RS}", "v_mul_lo_u32 v1, v1, s20", f"v_add_u32 v{vWd}, v1, v2")
    def dma1(kc,i):
        st=kc%NST
        if i<4:
            a(f"s_add_u32 s21, s{sL}, {st*STG+i*1024}", "s_mov_b32 m0, s21", f"s_add_u32 s22, s{sXo}, {kc*128+i*8*RS}")
            a(f"buffer_load_dwordx4 v{vX if i%2==0 else 15}, {sr(srdX,4)}, s22 offen lds")
        else:
            i-=4
            a(f"s_add_u32 s21, s{sL2}, {st*STG+16384+i*1024}", "s_mov_b32 m0, s21", f"s_add_u32 s22, s{sWo}, {(kc*64+i*8)*RS}")
            a(f"buffer_load_dwordx4 v{vWd}, {sr(srdW,4)}, s22 offen lds")
    for kc in range(PRE):
        for i in range(6): dma1(kc,i)
    x_frag_addr(a,sW,xa)
    a("v_and_b32 v1, 15, v0", "v_lshrrev_b32 v2, 2, v1", "v_and_b32 v1, 3, v1", "v_lshrrev_b32 v3, 4, v0", "v_lshrrev_b32 v4, 1, v3", "v_and_b32 v3, 1, v3")
    a("v_lshl_add_u32 v4, v4, 3, v2", "v_lshlrev_b32 v4, 7, v4")
    a("v_lshrrev_b32 v7, 1, v1", "v_lshl_add_u32 v7, v3, 1, v7", "v_and_b32 v1, 1, v1", "v_lshlrev_b32 v1, 3, v1", "v_lshrrev_b32 v2, 1, v2", "v_lshlrev_b32 v2, 2, v2")
    a("v_add_u32 v4, v4, v1", "v_add_u32 v4, 16384, v4")
    a("v_xor_b32 v3, v7, v2", f"v_lshl_add_u32 v{wa[0]}, v3, 4, v4", "v_xor_b32 v7, 4, v7", "v_xor_b32 v3, v7, v2", f"v_lshl_add_u32 v{wa[1]}, v3, 4, v4")
    a("v_and_b32 v1, 31, v0", "v_lshrrev_b32 v2, 5, v0", f"s_lshl_b32 s20, s{sW}, 5", "v_add_u32 v1, s20, v1", f"s_mov_b32 s20, {oRS}", "v_mul_lo_u32 v1, v1, s20", f"v_lshl_add_u32 v{vO}, v2, 4, v1")
    for r in range(32): a(f"v_mov_b32 v{ACC+r}, 0")
    def rd(buf,so,ks):
        a(f"ds_read_b128 {vr(XF[buf],4)}, v{xa[ks]} offset:{so}")
        for nt in range(2):
            for b in range(2):
                a(f"ds_read_b64_tr_b16 {vr(WF[buf]+4*nt+2*b,2)}, v{wa[nt]} offset:{so+(16*ks+4*b)*128}")
    vm={kc:6*(min(kc+PRE-1,8)-kc) for kc in range(9)}
    for kc in range(9):
        st=kc%NST; so=(st%2)*STG
        if kc>0 and st%2==0:
            d = 2*STG if st!=0 else -4*STG
            for r in xa+wa: a(f"v_add_u32 v{r}, {d if d>0 else hex(d & 0xffffffff)}, v{r}")
        if kc==0: stamp(a,2)
        a(f"s_waitcnt vmcnt({vm[kc]})", "s_barrier")
        if kc==0: stamp(a,3)
        rd(0,so,0)
        for ks in range(4):
            b=ks%2
            if ks<3:
                rd(1-b,so,ks+1); a("s_waitcnt lgkmcnt(5)")
            else: a("s_waitcnt lgkmcnt(0)")
            for nt in range(2):
                a(f"v_mfma_f32_32x32x16_bf16 {vr(ACC+16*nt,16)}, {vr(WF[b]+4*nt,4)}, {vr(XF[b],4)}, {vr(ACC+16*nt,16)}")
            if kc+PRE<9:
                for i in ((0,1),(2,3),(4,),(5,))[ks]: dma1(kc+PRE,i)
    a("s_nop 7","s_nop 7")
    stamp(a,4)
    a(f"s_mul_i32 s23, s{sRow}, {128*oRS}", f"s_add_u32 s23, s23, s{sWo}", f"s_add_u32 s23, s23, {hex(ooff)}")
    store_tile_bf16(a,ACC,srdO,vO,23,scale,TMP)

def pipe(a,n,rd,use,D,extra=0):
    for i in range(min(D,n)): rd(i,i%(D+1))
    for i in range(n):
        if i+D<n: rd(i+D,(i+D)%(D+1))
        a(f"s_waitcnt lgkmcnt({min(D,n-1-i)})")
        use(i,i%(D+1))
```

```python
from common import *
from tables import *
from gemm import *
GRID=256; LDS=147456
KVP=bool(os.environ.get('KVP'))
def emit_kv(a,sW,sId,srdX,srdK,srdV,srdWS):
    RS=1152; XS=16384; WB=6*XS
    vX=5; xa=[8,9,10,11]; vWa=12; XF=[16,20,160]; KF=[24,28,164]; VF=[32,36,168]; AK=48; AV=64; ST=96
    sXo,sL=26,28
    a(f"s_mul_i32 s{sXo}, s{sId}, {128*RS}", f"s_lshl_b32 s{sL}, s{sW}, 12")
    x_dma_setup(a,sW,vX,RS)
    a(f"s_lshl_b32 s20, s{sW}, 6", "v_add_u32 v1, s20, v0", "v_mul_u32_u24 v2, 21846, v1", "v_lshrrev_b32 v2, 16, v2", "v_mul_u32_u24 v3, 3, v2", "v_sub_u32 v3, v1, v3")
    a("v_mul_u32_u24 v3, 12, v3", "v_mul_u32_u24 v6, 36, v2", "v_add_u32 v6, v6, v3", "v_mul_u32_u24 v7, 80, v2", "v_add_u32 v7, v7, v3", f"v_add_u32 v7, {WB}, v7")
    for arr,s_ in enumerate((srdK,srdV)):
        for r in range(7):
            a(f"s_mov_b32 s20, {r*85*36}", f"buffer_load_dwordx3 {vr(ST+(arr*7+r)*4,3)}, v6, {sr(s_,4)}, s20 offen")
    for kc in range(4): x_dma(a,srdX,vX,sXo,sL,RS,kc,kc,XS)
    x_frag_addr(a,sW,xa)
    a("v_and_b32 v1, 15, v0", "v_lshrrev_b32 v2, 2, v1", "v_and_b32 v1, 3, v1", "v_lshrrev_b32 v3, 4, v0", "v_lshrrev_b32 v4, 1, v3", "v_and_b32 v3, 1, v3")
    a("v_lshl_add_u32 v4, v4, 3, v2", "v_mul_u32_u24 v4, 80, v4", "v_lshl_add_u32 v4, v3, 5, v4", "v_lshl_add_u32 v4, v1, 3, v4", f"v_add_u32 v{vWa}, {WB}, v4")
    for r in range(32): a(f"v_mov_b32 v{AK+r}, 0")
    if not KVP: stamp(a,2)
    a("s_waitcnt vmcnt(16)")
    if not KVP: stamp(a,3)
    for arr in range(2):
        for r in range(7):
            for j in range(3): a(f"ds_write_b32 v7, v{ST+(arr*7+r)*4+j} offset:{r*85*80+arr*40+4*j}")
    def rd(buf,so,ks,kk):
        a(f"ds_read_b128 {vr(XF[buf],4)}, v{xa[ks]} offset:{so}")
        for b in range(2):
            a(f"ds_read_b64_tr_b16 {vr(KF[buf]+2*b,2)}, v{vWa} offset:{(16*kk+4*b)*80}")
            a(f"ds_read_b64_tr_b16 {vr(VF[buf]+2*b,2)}, v{vWa} offset:{(16*kk+4*b)*80+40}")
    for kc in range(9):
        st=kc%6; so=(st%4)*XS
        if kc>0 and st%4==0:
            d = 4*XS if st!=0 else -4*XS
            for r in xa: a(f"v_add_u32 v{r}, {d if d>0 else hex(d & 0xffffffff)}, v{r}")
        if KVP and kc==4: stamp(a,2)
        a(f"s_waitcnt vmcnt({4*(min(kc+3,8)-kc)}) lgkmcnt(0)", "s_barrier")
        if KVP and kc==4: stamp(a,3)
        if KVP and kc==5: stamp(a,4)
        rd(0,so,0,4*kc); rd(1,so,1,4*kc+1)
        for ks in range(4):
            b=ks%3
            if ks<2: rd((ks+2)%3,so,ks+2,4*kc+ks+2)
            a(f"s_waitcnt lgkmcnt({(10,10,5,0)[ks]})")
            a(f"v_mfma_f32_32x32x16_bf16 {vr(AK,16)}, {vr(KF[b],4)}, {vr(XF[b],4)}, {vr(AK,16)}")
            a(f"v_mfma_f32_32x32x16_bf16 {vr(AV,16)}, {vr(XF[b],4)}, {vr(VF[b],4)}, {vr(AV,16)}")
            if kc+4<9:
                k2=kc+4
                a(f"s_add_u32 s21, s{sL}, {(k2%6)*XS+ks*1024}", "s_mov_b32 m0, s21", f"s_add_u32 s22, s{sXo}, {k2*128+ks*8*RS}")
                a(f"buffer_load_dwordx4 v{vX if ks%2==0 else 15}, {sr(srdX,4)}, s22 offen lds")
    a("s_nop 7","s_nop 7")
    if not KVP: stamp(a,4)
    a(f"s_lshl_b32 s20, s{sId}, 2", f"s_add_u32 s20, s20, s{sW}", "s_mul_i32 s21, s20, 2368", f"s_add_u32 s21, s21, {hex(KVI)}")
    ws=sr(srdWS,4)
    a("v_and_b32 v1, 31, v0", "v_lshrrev_b32 v2, 5, v0")
    for i in range(4): a(f"v_cvt_pk_bf16_f32 v{ST+i}, v{AK+2*i}, v{AK+2*i+1}")
    a(f"v_cvt_pk_bf16_f32 v{ST+4}, v{AK+8}, v{AK+9}")
    a("v_lshlrev_b32 v3, 4, v0")
    a(f"buffer_store_dwordx4 {vr(ST,4)}, v3, {ws}, s21 offen")
    a("v_lshlrev_b32 v3, 2, v1", "v_cmp_gt_u32 vcc, 32, v0", "v_mov_b32 v4, 0x7ff00000", "s_nop 0", "v_cndmask_b32 v3, v4, v3, vcc")
    a(f"buffer_store_dword v{ST+4}, v3, {ws}, s21 offen offset:1024")
    a(f"v_cndmask_b32 v6, 0, v{AK+8}, vcc", f"v_cndmask_b32 v7, 0, v{AK+9}, vcc", "v_max_f32 v6, |v6|, |v7|")
    for i in range(4): a(f"v_max3_f32 v6, |v{AK+2*i}|, |v{AK+2*i+1}|, v6")
    a("v_mov_b32 v7, 0")
    for i in range(8): a(f"v_max3_f32 v7, |v{AV+2*i}|, |v{AV+2*i+1}|, v7")
    a("v_cmp_gt_u32 vcc, 18, v1", "s_nop 1", "v_cndmask_b32 v7, 0, v7, vcc", "v_max_f32 v6, v6, v7")
    a("v_cmp_eq_u32 s[24:25], 18, v1", "v_mov_b32 v8, 0x3f803f80")
    a("v_mul_u32_u24 v3, 19, v2", "v_add_u32 v3, v3, v1", "v_lshlrev_b32 v3, 4, v3", "v_cmp_gt_u32 vcc, 19, v1", "s_nop 1", "v_cndmask_b32 v3, v4, v3, vcc")
    a("s_add_u32 s23, s21, 1152")
    for u in range(2):
        b=ST+8+4*u
        for i in range(4):
            a(f"v_cvt_pk_bf16_f32 v{b+i}, v{AV+8*u+2*i}, v{AV+8*u+2*i+1}", f"v_cndmask_b32 v{b+i}, v{b+i}, v8, s[24:25]")
        a(f"buffer_store_dwordx4 {vr(b,4)}, v3, {ws}, s23 offen offset:{608*u}")
    for sh in (1,2,4,8): a("s_nop 1", f"v_max_f32_dpp v6, v6, v6 row_shr:{sh} row_mask:0xf bank_mask:0xf")
    a("s_nop 1","v_max_f32_dpp v6, v6, v6 row_bcast:15 row_mask:0xa bank_mask:0xf")
    a("s_nop 1","v_max_f32_dpp v6, v6, v6 row_bcast:31 row_mask:0xc bank_mask:0xf")
    a("s_nop 1", "v_mul_f32 v6, 0x3f810000, v6", "v_cmp_eq_u32 vcc, 63, v0", "v_mov_b32 v3, 0", "s_nop 0", "v_cndmask_b32 v3, v4, v3, vcc")
    a("s_lshl_b32 s23, s20, 2", f"s_add_u32 s23, s23, {hex(KMAX)}", f"buffer_store_dword v6, v3, {ws}, s23 offen")

def emit_a1(a,sW,sId,srdX,srdWS,sTAB):
    TB=40960; RP=1184; SG=98304; SP=144
    AF=16
    BF=[56,60,176,180]; AC=[64,80]; OUTR=96
    TWc=[None,128,129,130]; TWs=[None,131,132,133]
    T=136; PK=160
    vA,vB=8,9; vC=[10,11,12,13]
    ws=sr(srdWS,4)
    a("v_lshlrev_b32 v6, 4, v0")
    a(f"s_lshr_b32 s20, s{sW}, 1", "s_lshl_b32 s20, s20, 4", f"s_and_b32 s21, s{sW}, 1", "s_lshl_b32 s21, s21, 2", "s_add_u32 s20, s20, s21")
    a("s_lshl_b32 s20, s20, 6", f"s_add_u32 s20, s20, s{sId}", "s_mul_i32 s26, s20, 1152")
    a(f"s_mul_i32 s27, s{sW}, 9472")
    roff=lambda r: ((8*(r&1)+(r>>1))*64*1152)
    for i in range(10):
        r0=(64*i)//74; thr=74*(r0+1)-64*i
        A_=roff(r0)+(64*i-74*r0)*16
        if thr<64 and r0+1<8:
            B_=roff(r0+1)+(64*i-74*(r0+1))*16
            a(f"v_cmp_le_u32 vcc, {thr}, v0", f"v_mov_b32 v5, {hex(B_ & 0xffffffff)}", f"s_add_u32 s21, s27, {i*1024}", f"v_cndmask_b32 v4, {hex(A_ & 0xffffffff)}, v5, vcc" if False else f"v_mov_b32 v4, {hex(A_ & 0xffffffff)}")
            a("s_mov_b32 m0, s21", "v_cndmask_b32 v4, v4, v5, vcc", "v_add_u32 v4, v4, v6")
        else:
            a(f"s_add_u32 s21, s27, {i*1024}", "s_mov_b32 m0, s21", f"v_add_u32 v4, {hex(A_ & 0xffffffff)}, v6")
        if i==9: a("s_mov_b64 exec, 0xffff")
        a(f"buffer_load_dwordx4 v4, {sr(srdX,4)}, s26 offen lds")
        if i==9: a("s_mov_b64 exec, -1")
    for i in range(14):
        a(f"s_add_u32 s20, s{sW}, {4*i}", "s_min_u32 s20, s20, 53", "s_lshl_b32 s20, s20, 10", f"s_add_u32 s21, s20, {TB}", "s_mov_b32 m0, s21", "s_nop 0")
        a(f"buffer_load_dwordx4 v6, {sr(sTAB,4)}, s20 offen lds")
    a("v_and_b32 v1, 15, v0", "v_lshrrev_b32 v2, 2, v1", "v_and_b32 v1, 3, v1", "v_lshrrev_b32 v3, 4, v0", "v_lshrrev_b32 v4, 1, v3", "v_and_b32 v3, 1, v3")
    a(f"s_lshl_b32 s20, s{sW}, 3", "v_lshl_add_u32 v3, v3, 2, v1", "v_add_u32 v3, s20, v3", f"v_mul_u32_u24 v3, {RP}, v3")
    a("v_lshl_add_u32 v4, v4, 3, v2", f"v_lshl_add_u32 v{vA}, v4, 3, v3")
    a(f"v_add_u32 v{vB}, {TB}, v6")
    stamp(a,2)
    a("s_waitcnt vmcnt(14)")
    stamp(a,3)
    for st in range(9):
        for b in range(2): a(f"ds_read_b64_tr_b16 {vr(AF+4*st+2*b,2)}, v{vA} offset:{st*128+b*32}")
        if st%4==3: a("s_waitcnt lgkmcnt(0)")
    a("v_and_b32 v1, 31, v0", "v_lshrrev_b32 v2, 5, v0")
    a(f"s_lshl_b32 s24, s{sId}, 6", f"s_add_u32 s24, s24, {hex(X1T)}", "s_add_u32 s25, s24, 4096")
    a(f"s_lshl_b32 s20, s{sW}, 4", "v_lshlrev_b32 v3, 3, v2", "v_add_u32 v3, s20, v3", f"v_add_u32 v3, {SG}, v3", f"v_mov_b32 v8, {SP}")
    ACS=[[64,80],[184,200]]
    TC01,TC23,TS01,TS23=128,130,132,134
    pr=lambda x: vr(x,2)
    def mstream(ft):
        m=Asm(); AC=ACS[ft%2]
        seq=[(p,st) for st in range(9) for p in range(2)]
        def rb(i,b):
            p,st=seq[i]; m(f"ds_read_b128 {vr(BF[b],4)}, v{vB} offset:{((ft*2+p)*9+st)*1024}")
        def us(i,b):
            p,st=seq[i]; m(f"v_mfma_f32_32x32x16_bf16 {vr(AC[p],16)}, {vr(AF+4*st,4)}, {vr(BF[b],4)}, {'0' if st==0 else vr(AC[p],16)}")
        pipe(m,len(seq),rb,us,3)
        return m.l
    def vstream(ft):
        v=Asm(); R,I=ACS[ft%2]
        t1,t2,Ar,Ai,Br,Bi=136,138,140,142,144,146
        for g in range(4):
            e=4*g
            for P_,(tc,ts) in enumerate(((TC01,TS01),(TC23,TS23))):
                r,i_=R+e+2*P_,I+e+2*P_; u1,u2=(t1,t2) if P_==0 else (148,150)
                v(f"v_pk_mul_f32 {pr(u1)}, {pr(i_)}, {pr(ts)}", f"v_pk_mul_f32 {pr(u2)}, {pr(r)}, {pr(ts)}")
            for P_,(tc,ts) in enumerate(((TC01,TS01),(TC23,TS23))):
                r,i_=R+e+2*P_,I+e+2*P_; u1,u2=(t1,t2) if P_==0 else (148,150)
                v(f"v_pk_fma_f32 {pr(r)}, {pr(r)}, {pr(tc)}, {pr(u1)}", f"v_pk_fma_f32 {pr(i_)}, {pr(i_)}, {pr(tc)}, {pr(u2)} neg_lo:[0,0,1] neg_hi:[0,0,1]")
            v(f"v_pk_add_f32 {pr(Ar)}, {pr(R+e)}, {pr(R+e+2)}", f"v_pk_add_f32 {pr(Ai)}, {pr(I+e)}, {pr(I+e+2)}")
            v(f"v_pk_add_f32 {pr(Br)}, {pr(R+e)}, {pr(R+e+2)} neg_lo:[0,1] neg_hi:[0,1]", f"v_pk_add_f32 {pr(Bi)}, {pr(I+e)}, {pr(I+e+2)} neg_lo:[0,1] neg_hi:[0,1]")
            ar_,cr,ai_,ci,br,dr,bi,di=Ar,Ar+1,Ai,Ai+1,Br,Br+1,Bi,Bi+1
            O=lambda o,p: OUTR+(o*2+p)*4+g
            v(f"v_add_f32 v{O(0,0)}, v{ar_}, v{cr}", f"v_add_f32 v{O(0,1)}, v{ai_}, v{ci}")
            v(f"v_sub_f32 v{O(2,0)}, v{ar_}, v{cr}", f"v_sub_f32 v{O(2,1)}, v{ci}, v{ai_}")
            v(f"v_add_f32 v{O(1,0)}, v{br}, v{di}", f"v_sub_f32 v{O(1,1)}, v{bi}, v{dr}")
            v(f"v_sub_f32 v{O(3,0)}, v{br}, v{di}", f"v_add_f32_e64 v{O(3,1)}, -v{bi}, -v{dr}")
        return v.l
    def setup(ft):
        a(f"v_add_u32 v4, {32*ft}, v1", "v_cvt_f32_u32 v5, v4", f"v_mov_b32 v{TC01}, 1.0", f"v_mov_b32 v{TS01}, 0")
        for r,(c_,s_) in ((1,(TC01+1,TS01+1)),(2,(TC23,TS23)),(3,(TC23+1,TS23+1))):
            a(f"v_mul_f32 v6, {hex(f2bits(r/576.0))}, v5", f"v_cos_f32 v{c_}, v6", f"v_sin_f32 v{s_}, v6")
        a("v_cmp_gt_u32 vcc, 73, v4", f"v_mov_b32 v7, {SG+289*SP}")
        for o,(sgn,base) in enumerate(((1,0),(1,144),(-1,288),(-1,144))):
            if sgn>0: a(f"v_add_u32 v6, {base}, v4")
            else: a(f"v_sub_u32 v6, {base}, v4")
            a(f"v_mad_u32_u24 v6, v6, v8, v3", f"v_cndmask_b32 v{vC[o]}, v7, v6, vcc")
    a("s_waitcnt vmcnt(9) lgkmcnt(0)", "s_barrier")
    a.l += mstream(0)
    for ft in range(3):
        setup(ft)
        if ft==0: a("s_nop 1")
        if ft<2: a(f"s_waitcnt vmcnt({5 if ft==0 else 0})", "s_barrier")
        V=vstream(ft); M=mstream(ft+1) if ft<2 else []
        n=len(V); k=0
        for i,ins in enumerate(V):
            a.l.append(ins)
            while k<len(M) and (k+1)*n<=(i+1)*len(M): a.l.append(M[k]); k+=1
        a.l += M[k:]
        for o in range(4):
            for p in range(2):
                b=PK+(o*2+p)*2; s_=OUTR+(o*2+p)*4
                a(f"v_cvt_pk_bf16_f32 v{b}, v{s_}, v{s_+1}", f"v_cvt_pk_bf16_f32 v{b+1}, v{s_+2}, v{s_+3}")
                a(f"ds_write_b64 v{vC[o]}, {vr(b,2)} offset:{64*p}")
        a("s_waitcnt lgkmcnt(0)")
        if ft==0: stamp(a,4)
    a("s_waitcnt lgkmcnt(0)", "s_barrier")
    a("v_lshrrev_b32 v1, 3, v0", "v_and_b32 v2, 7, v0", f"s_lshl_b32 s20, s{sW}, 3", "v_add_u32 v1, s20, v1")
    a(f"v_mul_u32_u24 v3, {SP}, v1", "v_lshl_add_u32 v3, v2, 4, v3", f"v_add_u32 v3, {SG}, v3")
    a("v_lshrrev_b32 v4, 2, v2", "v_and_b32 v5, 3, v2", "v_lshlrev_b32 v4, 12, v4", "v_lshl_add_u32 v4, v5, 4, v4", "v_lshl_add_u32 v4, v1, 13, v4")
    a("v_mov_b32 v7, 0x7ff00000")
    for b0 in range(0,10,5):
        for i in range(b0,b0+5): a(f"ds_read_b128 {vr(16+4*i,4)}, v3 offset:{i*32*SP}")
        for i in range(b0,b0+5):
            a(f"v_add_u32 v5, {32*i}, v1", "v_cmp_gt_u32 vcc, 289, v5", f"v_add_u32 v6, {hex(32*i*8192)}, v4", f"s_waitcnt lgkmcnt({b0+4-i})", f"v_cndmask_b32 v{60+i}, v7, v6, vcc")
            a(f"buffer_store_dwordx4 {vr(16+4*i,4)}, v{60+i}, {ws}, s24 offen")

def emit_w(a,sW,sId,srdR,srdI,srdWS):
    RUN=10240
    a(f"s_lshr_b32 s24, s{sId}, 1", f"s_and_b32 s25, s{sId}, 1")
    a("s_lshl_b32 s20, s24, 7", "s_lshl_b32 s21, s25, 4", "s_add_u32 s20, s20, s21", "s_mul_i32 s26, s20, 578")
    a("v_lshlrev_b32 v1, 4, v0")
    a(f"s_and_b32 s27, s{sW}, 1", f"s_lshr_b32 s28, s{sW}, 1")
    la=a.lab("wi"); lb=a.lab("wd")
    def issue(srd_):
        for jj in range(2):
            for i in range(10):
                a(f"s_lshl_b32 s20, s27, 1", f"s_add_u32 s20, s20, {jj}", f"s_mul_i32 s21, s20, {32*578}", "s_add_u32 s21, s21, s26", f"s_add_u32 s21, s21, {i*1024}")
                a(f"s_lshl_b32 s22, s28, 2", "s_add_u32 s22, s22, s20", f"s_mul_i32 s22, s22, {RUN}", f"s_add_u32 s22, s22, {i*1024}", "s_mov_b32 m0, s22", "s_nop 0")
                a(f"buffer_load_dwordx4 v1, {sr(srd_,4)}, s21 offen lds")
    a("s_cmp_eq_u32 s28, 1", f"s_cbranch_scc1 {la}")
    issue(srdR); a(f"s_branch {lb}", f"{la}:"); issue(srdI); a(f"{lb}:")
    a("v_and_b32 v2, 15, v0", "v_lshrrev_b32 v3, 4, v0", f"s_lshl_b32 s20, s{sW}, 2", "v_add_u32 v3, s20, v3")
    a("v_mul_u32_u24 v4, 578, v2", "v_lshl_add_u32 v4, v3, 1, v4", f"v_add_u32 v5, {4*RUN}, v4")
    a("s_lshr_b32 s20, s24, 1", "s_lshl_b32 s20, s20, 6", "s_and_b32 s21, s24, 1", "s_lshl_b32 s21, s21, 5", "s_add_u32 s20, s20, s21", "s_lshl_b32 s21, s25, 4", "s_add_u32 s20, s20, s21", "s_lshl_b32 s20, s20, 4", f"s_add_u32 s29, s20, {hex(WT)}")
    a("v_lshlrev_b32 v6, 13, v3", "v_lshl_add_u32 v6, v2, 4, v6", "v_mov_b32 v8, 0x7ff00000")
    stamp(a,2)
    a("s_waitcnt vmcnt(0)", "s_barrier")
    stamp(a,3)
    R=16
    for it0 in range(0,19,2):
        its=[it for it in (it0,it0+1) if it<19]
        for n,it in enumerate(its):
            for j in range(4):
                a(f"ds_read_u16 v{R+4*n+j}, v4 offset:{j*RUN+it*32}", f"ds_read_u16 v{R+32+4*n+j}, v5 offset:{j*RUN+it*32}")
            if n==0 and len(its)>1: a("s_waitcnt lgkmcnt(0)")
        a("s_waitcnt lgkmcnt(0)")
        for n,it in enumerate(its):
            for j in range(4): a(f"v_lshl_or_b32 v{R+4*n+j}, v{R+32+4*n+j}, 16, v{R+4*n+j}")
        for n,it in enumerate(its):
            a(f"v_add_u32 v7, {it*16}, v3", "v_cmp_gt_u32 vcc, 289, v7", f"v_add_u32 v9, {hex(it*16*8192)}, v6", "s_nop 0", "v_cndmask_b32 v9, v8, v9, vcc")
            a(f"buffer_store_dwordx4 {vr(R+4*n,4)}, v9, {sr(srdWS,4)}, s29 offen")
        R = 24 if R==16 else 16

def emit_k1(a):
    name="proj_kernel"; kernel_head(a,name)
    end=a.lab("end"); fin=a.lab("fin"); sW=16
    a(f"s_cmp_ge_u32 s2, {GRID}", f"s_cbranch_scc1 {end}")
    a("s_load_dwordx4 s[32:35], s[0:1], 0", "s_load_dwordx4 s[36:39], s[0:1], 16", "s_load_dwordx4 s[40:43], s[0:1], 32", "s_load_dwordx2 s[44:45], s[0:1], 48", "s_load_dwordx2 s[46:47], s[0:1], 80")
    stamp(a,0)
    wave_lane(a,sW)
    a("s_waitcnt lgkmcnt(0)")
    stamp(a,1)
    srd(a,8,46,WS_USED)
    lA1=a.lab("a1"); lKV=a.lab("kv"); lW=a.lab("w")
    a("s_cmp_ge_u32 s2, 224", f"s_cbranch_scc1 {lW}", "s_cmp_ge_u32 s2, 208", f"s_cbranch_scc1 {lKV}", "s_cmp_ge_u32 s2, 144", f"s_cbranch_scc1 {lA1}")
    srd(a,12,38,2048*1152); srd(a,48,40,576*1152)
    emit_gemm(a,sW,2,12,0,48,8,QS,1152,SCALE_Q)
    a(f"s_branch {fin}")
    a(f"{lA1}:"); srd(a,12,32,2048*1152); table_srd(a,48,"tab_a1",A1_SIZE); a("s_sub_u32 s17, s2, 144")
    emit_a1(a,sW,17,12,8,48); a(f"s_branch {fin}")
    a(f"{lKV}:"); srd(a,12,38,2048*1152); srd(a,48,42,576*36); srd(a,52,44,576*36); a("s_sub_u32 s17, s2, 208")
    emit_kv(a,sW,17,12,48,52,8); a(f"s_branch {fin}")
    a(f"{lW}:"); srd(a,48,34,2048*578); srd(a,52,36,2048*578); a("s_sub_u32 s17, s2, 224")
    emit_w(a,sW,17,48,52,8)
    a(f"{fin}:"); stamp_flush(a,0,sW,8,6)
    a(f"{end}:", "s_endpgm")
    kernel_desc(a,name,256)
```

```python
from common import *
from tables import *
TILE = 2368
ZREG = 176
K2_LDS = 4*CHUNK + 64
FLAG = 4*CHUNK
WAIT_AT = int(os.environ.get('WAIT_AT','11'))
NOPRIO = bool(os.environ.get('NOPRIO'))
MP = eval(os.environ.get('MP','(3,8,14,20)'))
FFT_WAIT = int(os.environ.get('FFT_WAIT','64'))
PRIO_LOW_AT = int(os.environ.get('PRIO_LOW_AT','12'))
PRIO_LOW_FFT = int(os.environ.get('PRIO_LOW_FFT','12'))

def mfma(a,D,A,B,C=None):
    c = vr(D,16) if C is None else C
    a(f"v_mfma_f32_32x32x16_bf16 {vr(D,16)}, {vr(A,4)}, {vr(B,4)}, {c}")

def cmul_pk(a, ar_, ai_, c_, s_, t1, t2, conj):
    a(f"v_pk_mul_f32 {vr(t1,2)}, {vr(ai_,2)}, {vr(s_,2)}")
    a(f"v_pk_mul_f32 {vr(t2,2)}, {vr(ar_,2)}, {vr(s_,2)}")
    if not conj:
        a(f"v_pk_fma_f32 {vr(ar_,2)}, {vr(ar_,2)}, {vr(c_,2)}, {vr(t1,2)}")
        a(f"v_pk_fma_f32 {vr(ai_,2)}, {vr(ai_,2)}, {vr(c_,2)}, {vr(t2,2)} neg_lo:[0,0,1] neg_hi:[0,0,1]")
    else:
        a(f"v_pk_fma_f32 {vr(ar_,2)}, {vr(ar_,2)}, {vr(c_,2)}, {vr(t1,2)} neg_lo:[0,0,1] neg_hi:[0,0,1]")
        a(f"v_pk_fma_f32 {vr(ai_,2)}, {vr(ai_,2)}, {vr(c_,2)}, {vr(t2,2)}")

def emit_fft(a, sWS, sTAB, sCol, hook):
    D=lambda t,p,q: 8+((t*2+p)*2+q)*4
    C=lambda q:40+4*q; S=lambda q:48+4*q; N=lambda q:56+4*q
    GF=lambda w,q:64+8*w+4*q; GI=lambda w,q:88+8*w+4*q
    AC=lambda t,p:112+(2*t+p)*16
    TW=lambda t,g,cs:176+((t*4+g)*2+cs)*4
    T1,T2,T3,T4,T5,T6=240,242,244,246,248,250
    vA,vL=1,2
    ws=sr(sWS,4); tb=sr(sTAB,4)
    a(f"s_lshl_b32 s20, s{sCol}, 13")
    a(f"s_add_u32 s21, s20, {hex(X1T)}")
    a(f"s_add_u32 s22, s20, {hex(WT)}")
    a(f"s_mul_i32 s23, s{sCol}, 48", f"s_add_u32 s23, s23, {hex(ZT)}")
    a(f"v_and_b32 v3, 31, v0", f"v_lshrrev_b32 v4, 5, v0")
    a(f"v_lshlrev_b32 v{vA}, 7, v3", f"v_lshl_add_u32 v{vA}, v4, 4, v{vA}")
    a(f"v_lshlrev_b32 v{vL}, 4, v0")
    for t in range(2):
        for p in range(2):
            for q in range(2):
                off=p*4096+t*64+q*32
                so = "s21"
                if off>4095:
                    a(f"s_add_u32 s24, s21, {p*4096}"); so="s24"; off-=p*4096
                a(f"buffer_load_dwordx4 {vr(D(t,p,q),4)}, v{vA}, {ws}, {so} offen offset:{off}")
    def tload(reg, byteoff):
        a(f"s_mov_b32 s24, {byteoff & ~0xfff}")
        a(f"buffer_load_dwordx4 {vr(reg,4)}, v{vL}, {tb}, s24 offen offset:{byteoff & 0xfff}")
    for i in range(6): tload(40+4*i, i*1024)
    for t in range(2):
        for g in range(4):
            for cs in range(2): tload(TW(t,g,cs), A2_TW1+((t*4+g)*2+cs)*1024)
    for i in range(12): tload(64+4*i, (6+i)*1024)
    a("s_waitcnt vmcnt(28)")
    for t in range(2):
        mfma(a,AC(t,0),D(t,0,0),C(0),"0"); mfma(a,AC(t,1),D(t,1,0),C(0),"0")
        mfma(a,AC(t,0),D(t,0,1),C(1));     mfma(a,AC(t,1),D(t,1,1),C(1))
        for q in range(2):
            mfma(a,AC(t,0),D(t,1,q),S(q)); mfma(a,AC(t,1),D(t,0,q),N(q))
    a("s_waitcnt vmcnt(12)")
    def twid_pack(conj, tws):
        for t in range(2):
            if t==1 or True: pass
            for g in range(4):
                for jj in (0,2):
                    r=4*g+jj
                    cmul_pk(a, AC(t,0)+r, AC(t,1)+r, tws(t,g,0)+jj, tws(t,g,1)+jj, T1 if jj==0 else T3, T2 if jj==0 else T4, conj)
            for p in range(2):
                for u in range(2):
                    for i in range(4):
                        a(f"v_cvt_pk_bf16_f32 v{D(t,p,u)+i}, v{AC(t,p)+8*u+2*i}, v{AC(t,p)+8*u+2*i+1}")
    a("s_nop 7")
    twid_pack(False, TW)
    WR=lambda mt,g:176+(mt*4+g)*4
    for mt in range(2):
        for g in range(4):
            off=(mt*4+g)*1024
            if off>4095: a(f"s_add_u32 s24, s22, 4096"); a(f"buffer_load_dwordx4 {vr(WR(mt,g),4)}, v{vL}, {ws}, s24 offen offset:{off-4096}")
            else: a(f"buffer_load_dwordx4 {vr(WR(mt,g),4)}, v{vL}, {ws}, s22 offen offset:{off}")
    TW2a=lambda g,cs:208+(g*2+cs)*4
    TW2b=lambda g,cs:176+(g*2+cs)*4
    for g in range(4):
        for cs in range(2): tload(TW2a(g,cs), A2_TW2+((0*4+g)*2+cs)*1024)
    a("s_waitcnt vmcnt(16)")
    for t in range(2):
        cc=(C,S,N) if t==0 else (lambda q:GF(0,q),lambda q:GF(1,q),lambda q:GF(2,q))
        mfma(a,AC(t,0),cc[0](0),D(t,0,0),"0"); mfma(a,AC(t,1),cc[0](0),D(t,1,0),"0")
        mfma(a,AC(t,0),cc[0](1),D(t,0,1));     mfma(a,AC(t,1),cc[0](1),D(t,1,1))
        for u in range(2):
            mfma(a,AC(t,0),cc[1](u),D(t,1,u)); mfma(a,AC(t,1),cc[2](u),D(t,0,u))
    a("s_waitcnt vmcnt(8)", "s_nop 7", "s_nop 3")
    a("s_mov_b32 s25, 0xffff0000")
    for g in range(4):
        for jj in (0,2):
            r=4*g+jj
            er,ei,orr,oi=AC(0,0)+r,AC(0,1)+r,AC(1,0)+r,AC(1,1)+r
            a(f"v_pk_add_f32 {vr(T1,2)}, {vr(er,2)}, {vr(orr,2)}", f"v_pk_add_f32 {vr(T2,2)}, {vr(ei,2)}, {vr(oi,2)}")
            a(f"v_pk_add_f32 {vr(orr,2)}, {vr(er,2)}, {vr(orr,2)} neg_lo:[0,1] neg_hi:[0,1]", f"v_pk_add_f32 {vr(oi,2)}, {vr(ei,2)}, {vr(oi,2)} neg_lo:[0,1] neg_hi:[0,1]")
            for mt,(xr,xi) in enumerate(((T1,T2),(orr,oi))):
                w=WR(mt,g)+jj
                a(f"v_lshlrev_b32 v{T3}, 16, v{w}", f"v_lshlrev_b32 v{T3+1}, 16, v{w+1}")
                a(f"v_and_b32 v{T4}, s25, v{w}", f"v_and_b32 v{T4+1}, s25, v{w+1}")
                cmul_pk(a, xr, xi, T3, T4, T5, T6, True)
            a(f"v_pk_add_f32 {vr(er,2)}, {vr(T1,2)}, {vr(orr,2)}", f"v_pk_add_f32 {vr(ei,2)}, {vr(T2,2)}, {vr(oi,2)}")
            a(f"v_pk_add_f32 {vr(orr,2)}, {vr(T1,2)}, {vr(orr,2)} neg_lo:[0,1] neg_hi:[0,1]", f"v_pk_add_f32 {vr(oi,2)}, {vr(T2,2)}, {vr(oi,2)} neg_lo:[0,1] neg_hi:[0,1]")
    for g in range(4):
        for cs in range(2): tload(TW2b(g,cs), A2_TW2+((1*4+g)*2+cs)*1024)
    for t in range(2):
        for p in range(2):
            for u in range(2):
                for i in range(4):
                    a(f"v_cvt_pk_bf16_f32 v{D(t,p,u)+i}, v{AC(t,p)+8*u+2*i}, v{AC(t,p)+8*u+2*i+1}")
    a("s_nop 1")
    for t in range(2):
        cc=(C,S,N) if t==0 else (lambda q:GI(0,q),lambda q:GI(1,q),lambda q:GI(2,q))
        mfma(a,AC(t,0),D(t,0,0),cc[0](0),"0"); mfma(a,AC(t,1),D(t,1,0),cc[0](0),"0")
        mfma(a,AC(t,0),D(t,0,1),cc[0](1));     mfma(a,AC(t,1),D(t,1,1),cc[0](1))
        for u in range(2):
            mfma(a,AC(t,0),D(t,1,u),cc[2](u)); mfma(a,AC(t,1),D(t,0,u),cc[1](u))
    a("s_waitcnt vmcnt(0)", "s_nop 7", "s_nop 3")
    hook()
    twid_pack(True, lambda t,g,cs: TW2a(g,cs) if t==0 else TW2b(g,cs))
    a("s_nop 1")
    for t in range(2):
        mfma(a,AC(t,0),D(t,0,0),C(0),"0"); mfma(a,AC(t,1),D(t,1,0),C(0),"0")
        mfma(a,AC(t,0),D(t,0,1),C(1));     mfma(a,AC(t,1),D(t,1,1),C(1))
        for u in range(2):
            mfma(a,AC(t,0),D(t,1,u),N(u)); mfma(a,AC(t,1),D(t,0,u),S(u))
    a("v_and_b32 v3, 31, v0", "v_lshrrev_b32 v4, 5, v0", "v_lshl_add_u32 v3, v3, 3, v4", f"v_mov_b32 v{T5}, {ZBLK}")
    for g in range(4):
        a(f"v_add_u32 v4, {2*g}, v3", f"v_mul_u32_u24 v{T1}, 21846, v4", f"v_lshrrev_b32 v{T1}, 16, v{T1}", f"v_mul_u32_u24 v{T2}, 3, v{T1}", f"v_sub_u32 v{T2}, v4, v{T2}")
        a(f"v_lshlrev_b32 v{T2}, 4, v{T2}", f"v_mad_u32_u24 v{T6-4+g if False else (T3,T3+1,T4,T4+1)[g]}, v{T1}, v{T5}, v{T2}")
    a("s_mov_b32 s35, s23", f"s_add_u32 s36, s23, {ZPL}", "s_mov_b32 s37, 1")
    a("s_waitcnt vmcnt(0)", "s_nop 7", "s_nop 3")
    for p in range(2):
        for g in range(4):
            b=ZREG+(p*4+g)*4
            for j in range(4):
                a(f"v_cvt_pk_bf16_f32 v{b+j}, v{AC(0,p)+4*g+j}, v{AC(1,p)+4*g+j}")

def zt_store(a,ws,k):
    p,g=divmod(k,4)
    a(f"buffer_store_dwordx4 {vr(ZREG+k*4,4)}, v{(244,245,246,247)[g]}, {ws}, s{35+p} offen")

def emit_k2(a):
    name="attn_kernel"
    kernel_head(a,name)
    S=[16,32]; O=48; P=64; T=[72,73]; Q1=76; Q2=80; K1=[84,88]; K2=[92,94]; V=[96,104]
    vK1,vK2,vV,vFl=2,3,4,5
    vKM=82; vD=83; vPoll=112; vOne=113; vF0=114
    sWS,sTAB=8,12
    sW,sC,sLd,sQ,sNext=16,17,18,28,29
    end=a.lab("end")
    a("s_cmp_ge_u32 s2, 256", f"s_cbranch_scc1 {end}")
    stamp(a,0)
    a("s_load_dwordx2 s[4:5], s[0:1], 80")
    a("v_lshrrev_b32 v1, 6, v0", "v_and_b32 v0, 63, v0", f"v_mov_b32 v{vFl}, {FLAG}", f"v_readfirstlane_b32 s{sW}, v1")
    a("v_mov_b32 v6, 0", "v_mov_b32 v7, 0", "v_mov_b32 v8, 0x100", "v_mov_b32 v9, 0")
    a(f"ds_write_b64 v{vFl}, v[6:7]", f"ds_write_b64 v{vFl}, v[6:7] offset:8", f"ds_write_b64 v{vFl}, v[8:9] offset:16", f"ds_write_b64 v{vFl}, v[6:7] offset:24")
    table_srd(a,sTAB,"tab_a2",A2_SIZE)
    a(f"s_lshl_b32 s{sQ}, s2, 3", f"s_add_u32 s{sQ}, s{sQ}, s{sW}", f"s_mul_i32 s{sQ}, s{sQ}, 1152")
    a("s_waitcnt lgkmcnt(0)")
    srd(a,sWS,4,WS_USED)
    a("s_barrier")
    ws=sr(sWS,4)
    stamp(a,1)
    def qloads():
        a("v_and_b32 v6, 31, v0", "v_lshrrev_b32 v7, 5, v0")
        a("v_mul_u32_u24 v252, 36, v6", "v_lshl_add_u32 v253, v7, 3, v252")
        a(f"buffer_load_dwordx2 {vr(Q1,2)}, v253, {ws}, s{sQ} offen", f"buffer_load_dwordx2 {vr(Q1+2,2)}, v253, {ws}, s{sQ} offen offset:16")
        a(f"buffer_load_dword v{Q2}, v252, {ws}, s{sQ} offen offset:32")
        a(f"v_lshlrev_b32 v254, 2, v0", f"s_mov_b32 s21, {hex(KMAX)}", f"buffer_load_dword v{vKM}, v254, {ws}, s21 offen")
    fft=a.lab("fft"); joinq=a.lab("joinq"); noload=a.lab("noload")
    a(f"s_mov_b32 s{sLd}, 0", "s_mov_b32 s33, 0", "s_mov_b32 s34, 0", "s_mov_b32 s37, 0")
    a(f"s_cmp_lt_u32 s{sW}, 4", f"s_cbranch_scc0 L_q")
    a("s_mov_b32 s19, s2", f"s_cmp_eq_u32 s{sW}, 0", f"s_cbranch_scc1 {fft}")
    a(f"s_cmp_eq_u32 s{sW}, 1", f"s_cbranch_scc0 L_aw")
    a("s_add_u32 s19, s2, 256", "s_cmp_lt_u32 s19, 289", f"s_cbranch_scc1 {fft}")
    a("L_aw:")
    a(f"s_cmp_ge_u32 s{sW}, 2", f"s_cselect_b32 s{sLd}, 3, 0")
    a("s_branch L_q")
    a(f"{fft}:")
    if FFT_WAIT:
        l=a.lab("fw")
        a(f"{l}:", f"ds_read_b32 v13, v{vFl} offset:24", "s_waitcnt lgkmcnt(0)", "v_readfirstlane_b32 s21, v13", "s_nop 0", f"s_cmp_lt_u32 s21, {FFT_WAIT}", f"s_cbranch_scc1 {l}")
    a("s_setprio 2")
    emit_fft(a,sWS,sTAB,19,qloads)
    a("s_mov_b32 s33, 1")
    a(f"s_branch {joinq}")
    a("L_q:")
    qloads()
    a(f"s_bitcmp1_b32 s{sW}, 1", f"s_cbranch_scc0 {joinq}")
    a(f"v_lshlrev_b32 v{vD}, 4, v0", "s_mov_b32 s34, 1")
    a(f"s_and_b32 s20, s{sW}, 1", f"s_lshr_b32 s21, s{sW}, 2", "s_lshl_b32 s21, s21, 1", "s_add_u32 s20, s20, s21", "s_lshl_b32 s21, s20, 10")
    for i in range(10):
        if i<9: a(f"s_add_u32 s22, s21, {4096*i}")
        else: a(f"s_mov_b32 s22, {36*1024}")
        a("s_mov_b32 m0, s22", f"s_add_u32 s23, s22, {hex(KVI)}")
        a(f"buffer_load_dwordx4 v{vD}, {ws}, s23 offen lds")
    a(f"{joinq}:")
    a(f"s_cmp_lt_u32 s{sW}, 4", "s_cbranch_scc1 L_pa", "s_setprio 1", "s_branch L_pb", "L_pa:", "s_setprio 2", "L_pb:")
    stamp(a,2)
    a("v_and_b32 v6, 31, v0", "v_lshrrev_b32 v7, 5, v0")
    a(f"v_lshlrev_b32 v{vK1}, 4, v0", f"v_lshlrev_b32 v{vK2}, 2, v6", f"v_lshlrev_b32 v{vD}, 4, v0")
    a("v_cmp_lt_u32 vcc, 18, v6", "v_mov_b32 v12, v6", "v_mov_b32 v13, 18"); a("v_cndmask_b32 v12, v12, v13, vcc")
    a("v_subrev_u32 v14, 20, v6", "v_cmp_gt_u32 vcc, 8, v14", "v_mov_b32 v13, 3", "s_nop 0", "v_cndmask_b32 v12, v12, v13, vcc")
    a("v_mul_u32_u24 v13, 19, v7", "v_add_u32 v12, v12, v13", f"v_lshlrev_b32 v{vV}, 4, v12")
    a(f"v_mov_b32 v{K2[0]+1}, 0x3f803f80", f"v_mov_b32 v{K2[1]+1}, 0x3f803f80", f"v_mov_b32 v{Q2+1}, 0", f"v_mov_b32 v{vOne}, 2")
    for r in range(16): a(f"v_mov_b32 v{O+r}, 0")
    a("s_cmp_eq_u32 s33, 1", "s_cbranch_scc1 L_nowait")
    a("s_cmp_eq_u32 s34, 1", "s_cbranch_scc1 L_bwait", "s_waitcnt vmcnt(0)", "s_branch L_nowait")
    a("L_bwait:", "s_waitcnt vmcnt(7)", "v_mov_b32 v13, 1", f"ds_add_u32 v{vFl}, v13 offset:24")
    a("L_nowait:")
    stamp(a,3)
    a("v_cmp_gt_u32 vcc, 32, v0", "v_mov_b32 v12, 0", "s_mov_b32 s21, 0xffff0000", f"v_cndmask_b32 v{Q2}, 0, v{Q2}, vcc")
    for r in (Q1,Q1+1,Q1+2,Q1+3,Q2):
        a(f"v_lshlrev_b32 v13, 16, v{r}", f"v_and_b32 v14, s21, v{r}", "v_add_f32 v12, |v13|, v12", "v_add_f32 v12, |v14|, v12")
    a("v_mov_b32 v13, v12", "v_mov_b32 v11, v%d"%vKM, "s_nop 0", "v_permlane32_swap_b32 v13, v12", "s_nop 1", "v_add_f32 v12, v12, v13")
    for sh in (1,2,4,8): a("s_nop 1", f"v_max_f32_dpp v11, v11, v11 row_shr:{sh} row_mask:0xf bank_mask:0xf")
    a("s_nop 1","v_max_f32_dpp v11, v11, v11 row_bcast:15 row_mask:0xa bank_mask:0xf")
    a("s_nop 1","v_max_f32_dpp v11, v11, v11 row_bcast:31 row_mask:0xc bank_mask:0xf")
    a("s_nop 1","v_readlane_b32 s21, v11, 63", "s_nop 1")
    a("v_mul_f32 v12, s21, v12", "v_mov_b32 v13, 0x42700000", "v_mov_b32 v14, s21")
    a("v_cmp_nlt_f32 vcc, v12, v13", "v_mov_b32 v13, 0x4e800000", "s_nop 0", "v_cmp_nlt_f32 s[22:23], v14, v13", "s_nop 1", "s_or_b64 vcc, vcc, s[22:23]")
    def poll(off,vreg):
        l=a.lab("poll")
        a(f"{l}:", f"ds_read_b32 v13, v{vreg} offset:{off}", "s_waitcnt lgkmcnt(0)", "v_readfirstlane_b32 s21, v13", "s_nop 0", "s_cmp_lt_u32 s21, 0x100", f"s_cbranch_scc1 {l}")
    fast=a.lab("fast")
    a("s_mov_b64 s[26:27], vcc")
    poll(24,vFl)
    stamp(a,4); stampc(a,7)
    a(f"s_sub_u32 s30, s{sW}, 2", "s_mul_i32 s30, s30, %d"%(19*1024), f"s_add_u32 s{sNext}, s30, {CHUNK}")
    def dma_piece(i):
        a(f"s_add_u32 s22, s{sNext}, {i*1024}")
        if i==18: a("s_min_u32 s22, s22, s31")
        a("s_mov_b32 m0, s22", f"s_add_u32 s23, s22, {hex(KVI)}")
        a(f"buffer_load_dwordx4 v{vD}, {ws}, s23 offen lds")
    a("s_cmp_eq_u64 s[26:27], 0", f"s_cbranch_scc1 {fast}")
    nl=a.lab("fbnl"); lp=a.lab("fbld"); nb=a.lab("fbnb")
    a("s_cmp_eq_u32 s34, 0", f"s_cbranch_scc1 {nb}", "s_waitcnt vmcnt(0)", "v_mov_b32 v13, 1", f"ds_add_u32 v{vFl}, v13", "s_mov_b32 s34, 0", f"{nb}:")
    a(f"s_cmp_eq_u32 s{sLd}, 0", f"s_cbranch_scc1 {nl}", f"s_mov_b32 s24, {CHUNK}", f"v_mov_b32 v13, v{vFl}")
    a(f"{lp}:", f"s_add_u32 s31, s24, {36*1024}")
    for i in range(19): dma_piece(i)
    a("s_waitcnt vmcnt(0)", "v_add_u32 v13, 4, v13", "s_nop 0", f"ds_add_u32 v13, v{vOne}")
    a(f"s_add_u32 s{sNext}, s{sNext}, {CHUNK}", f"s_add_u32 s24, s24, {CHUNK}", f"s_cmp_lt_u32 s24, {4*CHUNK}", f"s_cbranch_scc1 {lp}")
    a(f"s_mov_b32 s{sLd}, 0")
    a(f"{nl}:")
    for c in range(0,4): poll(4*c,vFl)
    a("v_mov_b32 v12, 0xff7fffff", f"v_mov_b32 v14, v{vK1}", f"v_mov_b32 v15, v{vK2}", "s_mov_b32 s20, 0")
    lt=a.lab("fbt")
    a(f"{lt}:")
    a(f"ds_read_b128 {vr(K1[0],4)}, v14", f"ds_read_b32 v{K2[0]}, v15 offset:1024", "s_waitcnt lgkmcnt(0)")
    a(f"v_mfma_f32_32x32x16_bf16 {vr(S[0],16)}, {vr(K1[0],4)}, {vr(Q1,4)}, 0")
    a(f"v_mfma_f32_32x32x8bf16_1k {vr(S[0],16)}, {vr(K2[0],2)}, {vr(Q2,2)}, {vr(S[0],16)}")
    a(f"v_add_u32 v14, {TILE}, v14", f"v_add_u32 v15, {TILE}, v15", "s_nop 7", "s_nop 3")
    for i in range(8): a(f"v_max3_f32 v12, v{S[0]+2*i}, v{S[0]+2*i+1}, v12")
    a("s_add_u32 s20, s20, 1", "s_cmp_lt_u32 s20, 64", f"s_cbranch_scc1 {lt}")
    a("v_mov_b32 v13, v12", "s_nop 1", "v_permlane32_swap_b32 v13, v12", "s_nop 1", "v_max_f32 v12, v12, v13")
    a("v_xor_b32 v12, 0x80000000, v12", "v_and_b32 v13, 0xffff0000, v12", "v_sub_f32 v14, v12, v13")
    a("v_lshrrev_b32 v13, 16, v13", "v_and_b32 v14, 0xffff0000, v14", "v_or_b32 v13, v13, v14")
    a("v_cmp_gt_u32 vcc, 32, v0", "s_nop 1", f"v_cndmask_b32 v{Q2+1}, 0, v13, vcc")
    a(f"{fast}:")
    def rdK(buf,t): a(f"ds_read_b128 {vr(K1[buf],4)}, v{vK1} offset:{t*TILE}", f"ds_read_b32 v{K2[buf]}, v{vK2} offset:{t*TILE+1024}")
    def rdV(buf,t): a(f"ds_read_b128 {vr(V[buf],4)}, v{vV} offset:{t*TILE+1152}", f"ds_read_b128 {vr(V[buf]+4,4)}, v{vV} offset:{t*TILE+1152+608}")
    rdK(0,0); rdK(1,1); rdV(0,0)
    a(f"s_cmp_lt_u32 s{sW}, 4", "s_cselect_b64 vcc, -1, 0", "s_cmp_eq_u32 s33, 1", "s_cselect_b64 vcc, 0, vcc")
    for r in range(4): a(f"v_mov_b32 v{V[1]+4+r}, 0", f"v_mov_b32 v{P+4+r}, 0")
    a(f"v_mov_b32 v{T[1]}, 0", f"v_mov_b32 v{vF0}, v{vFl}")
    a("s_waitcnt lgkmcnt(0)")
    a(f"v_mfma_f32_32x32x16_bf16 {vr(S[0],16)}, {vr(K1[0],4)}, {vr(Q1,4)}, 0")
    a(f"v_mfma_f32_32x32x8bf16_1k {vr(S[0],16)}, {vr(K2[0],2)}, {vr(Q2,2)}, {vr(S[0],16)}")
    a(f"s_mov_b32 s{sC}, 0", f"s_mov_b32 s31, {CHUNK+36*1024}", f"v_add_u32 v{vFl}, 4, v{vFl}")
    a("s_nop 7","s_nop 3")
    loop=a.lab("chunk")
    a(f"{loop}:")
    def setprio(p):
        if NOPRIO: return
        l=a.lab("pr"); a(f"s_cbranch_vccz {l}", f"s_setprio {p}", f"{l}:")
    mov=lambda i: f"v_mov_b32_sdwa v{P+i}, v{T[i%2]} dst_sel:WORD_0 dst_unused:UNUSED_PRESERVE src0_sel:WORD_1"
    def check(vreg,vaddr):
        l=a.lab("pk"); l2=a.lab("pks")
        a(f"v_readfirstlane_b32 s21, v{vreg}", "s_nop 0", "s_cmp_ge_u32 s21, 0x100", f"s_cbranch_scc1 {l}")
        a(f"{l2}:", f"ds_read_b32 v{vreg}, v{vaddr}", "s_waitcnt lgkmcnt(0)", f"v_readfirstlane_b32 s21, v{vreg}", "s_nop 0", "s_cmp_lt_u32 s21, 0x100", f"s_cbranch_scc1 {l2}")
        a(f"{l}:")
    for tt in range(16):
        cur,nx=tt%2,(tt+1)%2
        Sc=S[cur]
        if tt==0:
            l=a.lab("pr"); a(f"s_cmp_ge_u32 s{sW}, 4", f"s_cbranch_scc1 {l}", "s_setprio 2", f"{l}:")
        if tt==PRIO_LOW_FFT:
            l=a.lab("pr"); a(f"s_cmp_eq_u32 s33, 0", f"s_cbranch_scc1 {l}", "s_setprio 0", f"{l}:")
        if tt==PRIO_LOW_AT: setprio(0)
        if tt<5:
            l=a.lab("dm"); a(f"s_cmp_eq_u32 s{sLd}, 0", f"s_cbranch_scc1 {l}")
            for i in range(4*tt,min(4*tt+4,19)): dma_piece(i)
            a(f"{l}:")
        if 2<=tt<10:
            l=a.lab("zs"); a("s_cmp_eq_u32 s37, 0", f"s_cbranch_scc1 {l}"); zt_store(a,ws,tt-2)
            if tt==9: a("s_mov_b32 s37, 0")
            a(f"{l}:")
        if tt==1:
            l=a.lab("s0"); a("s_cmp_eq_u32 s34, 0", f"s_cbranch_scc1 {l}", "s_waitcnt vmcnt(0)", "v_mov_b32 v13, 1", f"ds_add_u32 v{vF0}, v13", "s_mov_b32 s34, 0", f"{l}:")
        if tt==11:
            l=a.lab("sg"); a(f"s_cmp_eq_u32 s{sLd}, 0", f"s_cbranch_scc1 {l}")
            a("s_waitcnt vmcnt(0)", f"ds_add_u32 v{vFl}, v{vOne}", f"s_sub_u32 s{sLd}, s{sLd}, 1", f"s_add_u32 s{sNext}, s{sNext}, {CHUNK}", f"s_add_u32 s31, s31, {CHUNK}")
            a(f"{l}:")
        ops=[]
        for i in range(8):
            ops.append(f"v_exp_f32 v{T[i%2]}, v{Sc+2*i}")
            ops.append(mov((i-1)%8))
            ops.append(f"v_exp_f32 v{P+i}, v{Sc+2*i+1}")
        for idx,op in enumerate(ops):
            a(op)
            if idx==MP[0]:
                a(f"v_mfma_f32_32x32x16_bf16 {vr(O,16)}, {vr(V[nx]+4,4)}, {vr(P+4,4)}, {vr(O,16)}")
                rdV(nx,tt+1)
            if idx==MP[1]:
                a("s_waitcnt lgkmcnt(2)")
                if tt==14: check(vPoll,vFl)
                if tt==3: check(vPoll,vF0)
                a(f"v_mfma_f32_32x32x16_bf16 {vr(S[nx],16)}, {vr(K1[nx],4)}, {vr(Q1,4)}, 0")
            if idx==MP[1]+1:
                rdK(cur,tt+2)
                if tt==13: a(f"ds_read_b32 v{vPoll}, v{vFl}")
                if tt==2: a(f"ds_read_b32 v{vPoll}, v{vF0}")
            if idx==MP[2]: a(f"v_mfma_f32_32x32x8bf16_1k {vr(S[nx],16)}, {vr(K2[nx],2)}, {vr(Q2,2)}, {vr(S[nx],16)}")
            if idx==MP[3]: a(f"v_mfma_f32_32x32x16_bf16 {vr(O,16)}, {vr(V[cur],4)}, {vr(P,4)}, {vr(O,16)}")
    a(f"v_add_u32 v{vK1}, {CHUNK}, v{vK1}", f"v_add_u32 v{vK2}, {CHUNK}, v{vK2}", f"v_add_u32 v{vV}, {CHUNK}, v{vV}", f"v_add_u32 v{vFl}, 4, v{vFl}")
    a(f"s_add_u32 s{sC}, s{sC}, 1", f"s_cmp_lt_u32 s{sC}, 4", f"s_cbranch_scc1 {loop}")
    a(mov(7), "s_nop 1", f"v_mfma_f32_32x32x16_bf16 {vr(O,16)}, {vr(V[1]+4,4)}, {vr(P+4,4)}, {vr(O,16)}")
    stamp(a,5); stampc(a,8)
    a("s_waitcnt lgkmcnt(0)", "s_nop 7", "s_nop 7")
    a(f"v_mov_b32 v12, v{O+10}", f"v_mov_b32 v13, v{O+10}", "s_nop 1", "v_permlane32_swap_b32 v12, v13", "s_nop 1", "v_rcp_f32 v12, v12", "s_nop 0")
    for r in range(10): a(f"v_mul_f32 v{O+r}, v{O+r}, v12")
    for i in range(5): a(f"v_cvt_pk_bf16_f32 v{P+i}, v{O+2*i}, v{O+2*i+1}")
    a(f"s_add_u32 s20, s{sQ}, {hex(OB)}")
    a(f"buffer_store_dwordx2 {vr(P,2)}, v253, {ws}, s20 offen", f"buffer_store_dwordx2 {vr(P+2,2)}, v253, {ws}, s20 offen offset:16")
    a("v_cmp_gt_u32 vcc, 32, v0", "s_and_saveexec_b64 s[22:23], vcc", f"buffer_store_dword v{P+4}, v252, {ws}, s20 offen offset:32", "s_mov_b64 exec, s[22:23]")
    stamp_flush(a,1,sW,sWS,9,6)
    a(f"{end}:", "s_endpgm")
    kernel_desc(a,name,256)
```

```python
from common import *
from tables import *
from gemm import *
NA3=86; GRID=144+NA3; LDS=147456
def emit_a3(a,sW,sId,srdWS,srdO,sTAB):
    TB=40960; P=240
    L=16; U=48; S=64; TW=[None,80,82,84]; T=86; PK=90
    vZ=[8,9,10,11]; vW=12; vA=13; vB=14; vO=15
    ws=sr(srdWS,4)
    a(f"s_lshl_b32 s20, s{sW}, 6","v_add_u32 v1, s20, v0","v_mul_u32_u24 v2, 21846, v1","v_lshrrev_b32 v2, 16, v2","v_mul_u32_u24 v3, 3, v2","v_sub_u32 v3, v1, v3")
    a(f"s_mul_i32 s24, s{sId}, {ZBLK}", f"s_add_u32 s24, s24, {hex(ZT)}", f"s_add_u32 s25, s24, {ZPL}")
    a("v_cmp_gt_u32 vcc, 73, v2","v_lshlrev_b32 v4, 4, v3","v_mov_b32 v7, 0x7ff00000")
    for o,(sgn,base) in enumerate(((1,0),(1,144),(-1,288),(-1,144))):
        if sgn>0: a(f"v_add_u32 v6, {base}, v2")
        else: a(f"v_sub_u32 v6, {base}, v2")
        a("v_mad_u32_u24 v6, v6, 48, v4", f"v_cndmask_b32 v{vZ[o]}, v7, v6, vcc")
    for o in range(4):
        for p in range(2): a(f"buffer_load_dwordx4 {vr(L+(o*2+p)*4,4)}, v{vZ[o]}, {ws}, s{24+p} offen")
    a("v_lshlrev_b32 v6, 4, v0")
    for i in range(13):
        a(f"s_mul_i32 s20, s{sW}, 13", f"s_add_u32 s20, s20, {i}", "s_min_u32 s20, s20, 49", "s_lshl_b32 s20, s20, 10", f"s_add_u32 s21, s20, {TB}", "s_mov_b32 m0, s21", "s_nop 0")
        a(f"buffer_load_dwordx4 v6, {sr(sTAB,4)}, s20 offen lds")
    a(f"v_add_u32 v{vB}, {TB}, v6")
    a("v_mov_b32 v48, 0","v_mov_b32 v49, 0","v_mov_b32 v50, 0","v_mov_b32 v51, 0", f"v_lshlrev_b32 v5, 4, v1", f"v_add_u32 v5, {146*P}, v5", "v_min_u32 v5, %d, v5"%(160*P-16), "ds_write_b128 v5, v[48:51]")
    a(f"v_mul_u32_u24 v5, {P}, v2", "v_mul_u32_u24 v6, 80, v3", "v_add_u32 v5, v5, v6", f"v_mov_b32 v7, {TB+51200}", f"v_cndmask_b32 v{vW}, v7, v5, vcc")
    a("v_cvt_f32_u32 v5, v2")
    for r in (1,2,3): a(f"v_mul_f32 v6, {hex(f2bits(r/576.0))}, v5", f"v_cos_f32 v{TW[r]}, v6", f"v_sin_f32 v{TW[r]+1}, v6")
    a("v_and_b32 v1, 15, v0", "v_lshrrev_b32 v2, 2, v1", "v_and_b32 v1, 3, v1", "v_lshrrev_b32 v3, 4, v0", "v_lshrrev_b32 v4, 1, v3", "v_and_b32 v3, 1, v3")
    a("v_lshl_add_u32 v4, v4, 3, v2", f"v_mul_u32_u24 v4, {P}, v4", "v_lshl_add_u32 v4, v3, 5, v4", f"v_lshl_add_u32 v{vA}, v1, 3, v4")
    stamp(a,2)
    a("s_waitcnt vmcnt(13)")
    stamp(a,3)
    pr=lambda x: vr(x,2)
    def add(d,x,y): a(f"v_pk_add_f32 {pr(d)}, {pr(x)}, {pr(y)}")
    def sub(d,x,y): a(f"v_pk_add_f32 {pr(d)}, {pr(x)}, {pr(y)} neg_lo:[0,1] neg_hi:[0,1]")
    for i in range(4):
        for st in range(8):
            a(f"v_lshlrev_b32 v{U+2*st}, 16, v{L+4*st+i}", f"v_and_b32 v{U+2*st+1}, 0xffff0000, v{L+4*st+i}")
        z0r,z0i,z1r,z1i,x2r,x2i,x3r,x3i=[U+2*s_ for s_ in range(8)]
        ar_,ai_,br,bi,cr,ci,dr,di=[S+2*s_ for s_ in range(8)]
        add(ar_,z0r,x2r); sub(ai_,z0i,x2i); sub(br,z0r,x2r); add(bi,z0i,x2i)
        add(cr,z1r,x3r); sub(ci,z1i,x3i); sub(dr,z1r,x3r); add(di,z1i,x3i)
        Sg=lambda r,p: U+2*(2*r+p)
        add(Sg(0,0),ar_,cr); add(Sg(0,1),ai_,ci); sub(Sg(2,0),ar_,cr); sub(Sg(2,1),ai_,ci)
        sub(Sg(1,0),br,di); add(Sg(1,1),bi,dr); add(Sg(3,0),br,di); sub(Sg(3,1),bi,dr)
        for r in (1,2,3):
            c="op_sel:[0,0] op_sel_hi:[1,0]"; s_="op_sel:[0,1] op_sel_hi:[1,1]"
            c3="op_sel:[0,0,0] op_sel_hi:[1,0,1]"
            a(f"v_pk_mul_f32 {pr(T)}, {pr(Sg(r,1))}, {pr(TW[r])} {s_}", f"v_pk_mul_f32 {pr(T+2)}, {pr(Sg(r,0))}, {pr(TW[r])} {s_}")
            a(f"v_pk_fma_f32 {pr(Sg(r,0))}, {pr(Sg(r,0))}, {pr(TW[r])}, {pr(T)} {c3} neg_lo:[0,0,1] neg_hi:[0,0,1]")
            a(f"v_pk_fma_f32 {pr(Sg(r,1))}, {pr(Sg(r,1))}, {pr(TW[r])}, {pr(T+2)} {c3}")
        for p in range(2):
            b=PK+4*p+8*(i%2)
            for e in range(2):
                a(f"v_cvt_pk_bf16_f32 v{b+2*e}, v{Sg(0,p)+e}, v{Sg(1,p)+e}", f"v_cvt_pk_bf16_f32 v{b+2*e+1}, v{Sg(2,p)+e}, v{Sg(3,p)+e}")
            a(f"ds_write_b128 v{vW}, {vr(b,4)} offset:{16*i+p*73*P}")
    a("s_waitcnt vmcnt(0) lgkmcnt(0)", "s_barrier")
    stamp(a,4)
    AF=16; BF=[96,100,104,108]; AC=[64,80]; PKo=112
    a("v_and_b32 v1, 31, v0", "v_lshrrev_b32 v2, 5, v0", "v_mul_u32_u24 v2, 2304, v2", f"v_lshl_add_u32 v{vO}, v1, 3, v2")
    a(f"s_mul_i32 s26, s{sId}, {24*2304}")
    def store(acc,sOff,vreg,nt):
        for g in range(4):
            b=PKo+2*g
            a(f"v_cvt_pk_bf16_f32 v{b}, v{acc+4*g}, v{acc+4*g+1}", f"v_cvt_pk_bf16_f32 v{b+1}, v{acc+4*g+2}, v{acc+4*g+3}")
            a(f"s_add_u32 s27, s{sOff}, {2*g*2304}", f"buffer_store_dwordx2 {vr(b,2)}, v{vreg}, {sr(srdO,4)}, s27 offen offset:{nt*256}")
    l3=a.lab("w3"); ld=a.lab("a3d")
    a(f"s_cmp_eq_u32 s{sW}, 3", f"s_cbranch_scc1 {l3}")
    a(f"s_mul_i32 s20, s{sW}, 80", f"v_add_u32 v{vA}, s20, v{vA}", f"s_mul_i32 s21, s{sW}, {8*2304}", "s_add_u32 s26, s26, s21")
    for st in range(10):
        for b in range(2): a(f"ds_read_b64_tr_b16 {vr(AF+4*st+2*b,2)}, v{vA} offset:{(16*st+4*b)*P}")
        if st in (5,9): a("s_waitcnt lgkmcnt(0)")
    for n2 in range(2):
        seq=[(p,st) for st in range(10) for p in range(2)]
        def rd(i,b): p,st=seq[i]; a(f"ds_read_b128 {vr(BF[b],4)}, v{vB} offset:{((2*n2+p)*10+st)*1024}")
        def use(i,b):
            p,st=seq[i]; a(f"v_mfma_f32_32x32x16_bf16 {vr(AC[p],16)}, {vr(AF+4*st,4)}, {vr(BF[b],4)}, {'0' if st==0 else vr(AC[p],16)}")
        pipe(a,20,rd,use,3)
        a("s_nop 7","s_nop 3")
        store(AC[0],26,vO,2*n2)
        store(AC[1],26,vO,2*n2+1)
        a("s_nop 1")
    a(f"s_branch {ld}", f"{l3}:")
    a("v_cmp_gt_u32 vcc, 16, v1", "v_mov_b32 v7, 0x7ff00000", "s_nop 0", f"v_cndmask_b32 v{vO}, v7, v{vO}, vcc")
    BB=96
    for st in range(10): a(f"ds_read_b128 {vr(BB+4*st,4)}, v{vB} offset:{(40+st)*1024}")
    AC3=[136,152,168]; PK3=184
    AFs=[16,20,24,28]
    seq=[(m,st) for st in range(10) for m in range(3)]
    a("s_waitcnt lgkmcnt(0)")
    def rd2(i):
        m,st=seq[i]
        for b in range(2): a(f"ds_read_b64_tr_b16 {vr(AFs[i%4]+2*b,2)}, v{vA} offset:{(16*st+4*b)*P+80*m}")
    for i in range(3): rd2(i)
    for i,(m,st) in enumerate(seq):
        if i+3<len(seq): rd2(i+3)
        a(f"s_waitcnt lgkmcnt({2*min(3,len(seq)-1-i)})")
        a(f"v_mfma_f32_32x32x16_bf16 {vr(AC3[m],16)}, {vr(AFs[i%4],4)}, {vr(BB+4*st,4)}, {'0' if st==0 else vr(AC3[m],16)}")
    a("s_nop 7","s_nop 3")
    for m in range(3):
        for g in range(4):
            b=PK3+2*(4*m+g); acc=AC3[m]
            a(f"v_cvt_pk_bf16_f32 v{b}, v{acc+4*g}, v{acc+4*g+1}", f"v_cvt_pk_bf16_f32 v{b+1}, v{acc+4*g+2}, v{acc+4*g+3}")
            a(f"s_add_u32 s27, s26, {(8*m+2*g)*2304}", f"buffer_store_dwordx2 {vr(b,2)}, v{vO}, {sr(srdO,4)}, s27 offen offset:{4*256}")
    a(f"{ld}:")

def emit_k3(a):
    name="outp_kernel"; kernel_head(a,name)
    end=a.lab("end"); fin=a.lab("fin"); sW=16
    a(f"s_cmp_ge_u32 s2, {GRID}", f"s_cbranch_scc1 {end}")
    a("s_load_dwordx2 s[40:41], s[0:1], 56", "s_load_dwordx2 s[42:43], s[0:1], 64", "s_load_dwordx2 s[46:47], s[0:1], 80")
    stamp(a,0)
    wave_lane(a,sW)
    a("s_waitcnt lgkmcnt(0)")
    stamp(a,1)
    srd(a,8,46,WS_USED); srd(a,12,42,2048*2304)
    lA=a.lab("a3")
    a(f"s_cmp_lt_u32 s2, {NA3}", f"s_cbranch_scc1 {lA}")
    srd(a,48,40,576*1152); a(f"s_sub_u32 s17, s2, {NA3}")
    emit_gemm(a,sW,17,8,OB,48,12,1152,2304,None)
    a(f"s_branch {fin}")
    a(f"{lA}:"); table_srd(a,48,"tab_a3",A3_SIZE)
    emit_a3(a,sW,2,8,12,48)
    a(f"{fin}:"); stamp_flush(a,2,sW,8,6)
    a(f"{end}:", "s_endpgm")
    kernel_desc(a,name,256)
```
